```python
import torch

def _softmax(x, axis=-1):
    return torch.softmax(x, dim=axis)
def _gelu(x):
    return torch.nn.functional.gelu(x, approximate="tanh")
def _silu(x):
    return torch.nn.functional.silu(x)
def _sigmoid(x):
    return torch.sigmoid(x)
def _layernorm(x, axis=-1, eps=1e-5):
    m = x.mean(dim=axis, keepdim=True)
    v = x.var(dim=axis, keepdim=True, unbiased=False)
    return (x - m) / torch.sqrt(v + eps)
def _scatter_add(tgt, idx, src, axis=0):
    return tgt.clone().index_add_(axis, idx, src)
def _segment_sum(src, seg, n):
    out = torch.zeros((n,) + src.shape[1:], dtype=src.dtype)
    return out.index_add_(0, seg, src)
def _pad(x, pw):
    flat = tuple(v for pair in reversed(pw) for v in pair)
    return torch.nn.functional.pad(x, flat)

kernel_name = 'recurrent_scan__compressed_kv_cla__geglu_ffn__decode'

def setup_inputs():

    _w = (lambda a: (lambda t: t.to(torch.bfloat16) if t.is_floating_point() else t)(torch.as_tensor(a)))
    def _A_setup():
        B, H, Sq, Sk, D, M = 2, 16, 1, 4096, 256, 448
        Dc = 4 * D
        return {
            "x": _w((lambda *s: torch.randn(*s, dtype=torch.bfloat16) * 0.05)(B, Sq, M)),
            "c_kv": _w((lambda *s: torch.randn(*s, dtype=torch.bfloat16) * 0.8)(B, Sk, Dc)),
            "w_q": _w((lambda *s: torch.randn(*s, dtype=torch.bfloat16) * 1.6)(M, H, D) * (M ** -0.5)),
            "w_uk": _w((lambda *s: torch.randn(*s, dtype=torch.bfloat16) * 1.6)(Dc, H, D) * (Dc ** -0.5)),
            "w_uv": _w((lambda *s: torch.randn(*s, dtype=torch.bfloat16) * 0.8)(Dc, H, D) * (Dc ** -0.5)),
            "w_o": _w((lambda *s: torch.randn(*s, dtype=torch.bfloat16) * 0.8)(H, D, M) * ((H * D) ** -0.5)),
        }
    _A_in = _A_setup()

    def _B_setup():
        B, S, D, F = 2, 1, 448, 1792
        return {
            "x": _w((lambda *s: torch.randn(*s, dtype=torch.bfloat16) * 0.05)(B, S, D)),
            "w_gate": _w((lambda *s: torch.randn(*s, dtype=torch.bfloat16) * 0.2)(D, F)),
            "w_up": _w((lambda *s: torch.randn(*s, dtype=torch.bfloat16) * 0.2)(D, F)),
            "w_down": _w((lambda *s: torch.randn(*s, dtype=torch.bfloat16) * 0.2)(F, D)),
        }
    _B_in = _B_setup()

    return {
        "A_x": _A_in["x"],
        "A_c_kv": _A_in["c_kv"],
        "A_w_q": _A_in["w_q"],
        "A_w_uk": _A_in["w_uk"],
        "A_w_uv": _A_in["w_uv"],
        "A_w_o": _A_in["w_o"],
        "B_x": _B_in["x"],
        "B_w_gate": _B_in["w_gate"],
        "B_w_up": _B_in["w_up"],
        "B_w_down": _B_in["w_down"],
    }

def reference(A_x, A_c_kv, A_w_q, A_w_uk, A_w_uv, A_w_o, B_x, B_w_gate, B_w_up, B_w_down):
    def _A_ref(x, c_kv, w_q, w_uk, w_uv, w_o):
        B, Sq, M = x.shape[0], x.shape[1], x.shape[2]
        Sk = c_kv.shape[1]
        H, D = w_q.shape[1], w_q.shape[2]
        q = torch.einsum("bqm,mhd->bhqd", x, w_q)
        k = torch.einsum("bkc,chd->bhkd", c_kv, w_uk)
        v = torch.einsum("bkc,chd->bhkd", c_kv, w_uv)
        scores = torch.einsum("bhqd,bhkd->bhqk", q, k) * (D ** -0.5)
        off = Sk - Sq
        qi = torch.arange(Sq)[:, None]
        kj = torch.arange(Sk)[None, :]
        cmask = kj <= (qi + off)
        scores = torch.where(cmask[None, None], scores, -1e9)
        p = _softmax(scores, axis=-1)
        ctx = torch.einsum("bhqk,bhkd->bhqd", p, v)
        return torch.einsum("bhqd,hdm->bqm", ctx, w_o)

    def _B_ref(x, w_gate, w_up, w_down):
        return (_gelu(x @ w_gate) * (x @ w_up)) @ w_down

    x = A_x
    xn = _layernorm(x, axis=-1)
    s = _A_ref(xn, A_c_kv, A_w_q, A_w_uk, A_w_uv, A_w_o)
    g = _silu(_B_ref(xn, B_w_gate, B_w_up, B_w_down))
    return x + s * g
```

```python
import re

REG_RE = re.compile(r'(?<![\w.])(v|s|a)(?:\[(\d+):(\d+)\]|(\d+))(?![\w])|(?<![\w])(vcc|exec|m0|vcc_lo|vcc_hi|exec_lo|exec_hi)(?![\w])')
TRANS = ('v_exp_f32', 'v_log_f32', 'v_rcp_f32', 'v_rsq_f32', 'v_sqrt_f32', 'v_sin_f32', 'v_cos_f32', 'v_rcp_iflag_f32')

def regs_of(op):
    out = set()
    for m in REG_RE.finditer(op):
        if m.group(1):
            k = m.group(1)
            if m.group(2) is not None:
                for i in range(int(m.group(2)), int(m.group(3)) + 1): out.add((k, i))
            else:
                out.add((k, int(m.group(4))))
        else:
            n = m.group(5)
            if n.startswith('vcc'): out.add(('s', 'vcc'))
            elif n.startswith('exec'): out.add(('s', 'exec'))
            else: out.add(('s', 'm0'))
    return out

def split_ops(s):
    ops, depth, cur = [], 0, ''
    for ch in s:
        if ch in '[(': depth += 1
        if ch in '])': depth -= 1
        if ch == ',' and depth == 0:
            ops.append(cur.strip()); cur = ''
        else:
            cur += ch
    if cur.strip(): ops.append(cur.strip())
    return ops

class Ins:
    def __init__(self, text):
        self.text = text
        t = text.split(';')[0].strip()
        self.label = None
        if t.endswith(':'):
            self.label = t[:-1]; self.kind = 'label'; self.mn = ''; self.rd = set(); self.wr = set(); return
        if t == '' or t.startswith('.'):
            self.kind = 'none'; self.mn = ''; self.rd = set(); self.wr = set(); return
        parts = t.split(None, 1)
        mn = parts[0]; self.mn = mn
        ops = split_ops(parts[1]) if len(parts) > 1 else []
        self.ops = ops
        rd, wr = set(), set()
        allr = [regs_of(o) for o in ops]
        self.dpp = mn.endswith('_dpp') or 'row_' in t or 'quad_perm' in t
        self.target = None
        self.srcC = set(); self.srcAB = set()
        self.wide_store = set()
        if mn.startswith('v_mfma'):
            self.kind = 'mfma'
            wr = allr[0]; self.srcAB = allr[1] | allr[2]; self.srcC = allr[3]
            rd = self.srcAB | self.srcC
            self.passes = 8 if '32x32' in mn else 4
        elif mn.startswith('v_'):
            self.kind = 'valu'
            if mn.startswith('v_permlane') and 'swap' in mn:
                wr = allr[0] | allr[1]; rd = allr[0] | allr[1]
            else:
                wr = set(allr[0])
                for r in allr[1:]: rd |= r
                if mn.startswith(('v_fmac', 'v_dot2c', 'v_pk_fmac', 'v_writelane')) or self.dpp: rd |= allr[0]
                if mn.startswith(('v_add_co', 'v_sub_co', 'v_addc_co', 'v_subb_co')):
                    wr |= allr[1]
        elif mn.startswith(('global_', 'buffer_', 'flat_')):
            self.kind = 'vmem'
            is_lds = ' lds' in (' ' + t) and mn.startswith('buffer_') or mn.startswith('global_load_lds')
            self.ldsdma = is_lds
            if 'store' in mn or is_lds or mn in ('buffer_wbl2', 'buffer_inv') or ('atomic' in mn and 'sc0' not in t):
                for r in allr: rd |= r
                if 'store' in mn and ('x4' in mn or 'x3' in mn):
                    self.wide_store = allr[1] if mn.startswith('global') else allr[0]
            else:
                wr = allr[0]
                for r in allr[1:]: rd |= r
            if is_lds: rd.add(('s', 'm0'))
        elif mn.startswith('ds_'):
            self.kind = 'ds'
            if mn.startswith(('ds_read', 'ds_bpermute', 'ds_permute', 'ds_swizzle')) or '_rtn' in mn:
                wr = allr[0]
                for r in allr[1:]: rd |= r
            else:
                for r in allr: rd |= r
        elif mn.startswith('s_'):
            self.kind = 'salu'
            if mn.startswith(('s_cbranch', 's_branch')):
                self.kind = 'branch'; self.target = ops[0]
            elif mn.startswith(('s_cmp', 's_waitcnt', 's_nop', 's_barrier', 's_setprio', 's_sleep', 's_endpgm', 's_bitcmp')):
                for r in allr: rd |= r
            else:
                if allr: wr = set(allr[0])
                for r in allr[1:]: rd |= r
                if 'saveexec' in mn: wr.add(('s', 'exec'))
        else:
            raise ValueError('unknown instr ' + t)
        self.rd, self.wr = rd, wr
    def states(self):
        if self.kind in ('label', 'none'): return 0
        if self.mn == 's_nop': return int(self.ops[0], 0) + 1
        return 1

def vset(s): return {r for r in s if r[0] in ('v', 'a')}
def sset(s): return {r for r in s if r[0] == 's'}

def required(p, c):
    n = 0
    if p.kind == 'valu':
        pw_v, pw_s = vset(p.wr), sset(p.wr)
        if c.kind == 'mfma' and pw_v & c.rd: n = max(n, 2)
        if c.kind == 'vmem' and pw_s & c.rd: n = max(n, 5)
        if c.kind == 'valu':
            if pw_s & c.rd:
                n = max(n, 4 if c.mn.startswith(('v_readlane', 'v_writelane')) else 2)
            if c.mn.startswith(('v_readlane', 'v_readfirstlane')) and pw_v & c.rd: n = max(n, 1)
            if (c.dpp or c.mn.startswith('v_permlane')) and pw_v & c.rd: n = max(n, 2)
            if ('sdwa' in p.mn or 'op_sel' in p.text) and pw_v & (c.rd | c.wr): n = max(n, 1)
        if p.mn.replace('_e32', '').replace('_e64', '') in TRANS and pw_v & c.rd: n = max(n, 1)
    if p.kind == 'mfma':
        big = {4: 8, 8: 12}[p.passes]
        if c.kind == 'mfma':
            if p.wr & c.srcAB: n = max(n, big)
            if p.wr & c.srcC and not (p.wr == c.srcC and p.mn == c.mn): n = max(n, big)
            if p.wr & c.wr and not (p.wr & c.srcC): n = max(n, big)
        elif c.kind in ('valu', 'vmem', 'ds'):
            if p.wr & (c.rd | c.wr): n = max(n, big)
            if c.kind == 'valu' and p.srcC & c.wr: n = max(n, {4: 3, 8: 7}[p.passes])
    if p.kind == 'salu' and ('s', 'm0') in p.wr and c.kind == 'vmem' and getattr(c, 'ldsdma', False): n = max(n, 1)
    if p.kind == 'vmem' and p.wide_store and p.wide_store & c.wr:
        n = max(n, 2 if c.kind in ('valu', 'mfma') else 1)
    return n

class Asm:
    def __init__(self):
        self.items = []
        self.uid = 0
    def __call__(self, s):
        for line in s.split('\n'):
            if line.strip(): self.items.append(Ins(line.strip()))
    def label(self, name): self.items.append(Ins(name + ':'))
    def newlabel(self, base='L'):
        self.uid += 1
        return f'{base}_{self.uid}'
    def comment(self, s): self.items.append(Ins('; ' + s))
    def hazard_pass(self):
        MAXD = 12
        changed = True
        total = 0
        while changed:
            changed = False
            it = self.items
            labels = {x.label: i for i, x in enumerate(it) if x.kind == 'label'}
            srcs = {}
            for i, x in enumerate(it):
                if x.kind == 'branch': srcs.setdefault(labels[x.target], []).append(i)
            def preds(i):
                out = []
                if i > 0:
                    q = it[i - 1]
                    if not (q.mn in ('s_branch', 's_endpgm')): out.append(i - 1)
                if it[i].kind == 'label': out += srcs.get(i, [])
                return out
            for i, c in enumerate(it):
                if c.kind in ('label', 'none', 'branch', 'salu'): continue
                need = 0
                stack = [(p, 0) for p in preds(i)]
                seen = {}
                while stack:
                    j, d = stack.pop()
                    if d >= MAXD: continue
                    if j in seen and seen[j] <= d: continue
                    seen[j] = d
                    p = it[j]
                    if p.kind not in ('label', 'none'):
                        r = required(p, c)
                        if r - d > need: need = r - d
                    d2 = d + p.states()
                    for q in preds(j): stack.append((q, d2))
                if need > 0:
                    it.insert(i, Ins(f's_nop {need - 1}'))
                    total += 1
                    changed = True
                    break
        return total
    def text(self):
        out = []
        for x in self.items:
            out.append(x.text if x.kind == 'label' else '    ' + x.text)
        return '\n'.join(out) + '\n'
```

```python
import sys, math, struct
from asmgen import Asm

KN = 'recurrent_scan__compressed_kv_cla__geglu_ffn__decode_kernel'

BLK = 0x40000
WS_Q1 = 0x1000
WS_QA = WS_Q1 + 0x2000
WS_ST = WS_QA + 0x4000
WS_SN2 = WS_ST + 0x1000
WS_SN25 = WS_SN2 + 0x800
WS_SN3 = WS_SN25 + 0x800
WS_SN5 = WS_SN3 + 0x800
WS_SNC = WS_SN5 + 0x800
WS_GU = WS_SNC + 0x800
WS_FP = WS_GU + 14 * 2048
WS_SP = WS_FP + 7 * 3584
assert WS_SP + 7 * 8192 <= BLK and WS_SP % 128 == 0
WS_SX = 0x200000
WS_OW = 0x400000
WS_TS = 0x600000
L2_CKV = 0
L2_W = 131072
L2_QF = L2_W
L2_P = L2_W + 16384
L2_MX = L2_P + 4096
L2_FIN = L2_MX + 256
L2_H = L2_FIN + 512
L1_WUK = 0
L1_WO = 65536
L1_GU = 122880
L1_Q = 155648
L1_CTX = L1_Q + 1024
L1_WT = L1_CTX + 2048
L_XN = 159744
L_FL = L_XN + 1792
LDS_BYTES = 163840
assert L1_WT + 128 <= L_XN and L_FL + 64 <= LDS_BYTES and L_FL % 16 == 0

LOG2E = 1.4426950408889634
def f32(x): return '0x%08x' % struct.unpack('<I', struct.pack('<f', x))[0]
M_C01 = 0x0003000300030003
A_P1, A_QA, A_H25, A_P, A_O, A_FIN = range(1, 7)
W_Q, W_FREE, W_S3, W_H3, W_WT, W_CTX = range(1, 7)

DEF = dict(dbg=False, nt=True, tha=8, thb=32, nslow=16, nsig=104, h2at=110, h1at=64, th1=48, th2=40, n1=56, n0=0, th0=8, hold=0)

def gen(**kw):
    o = dict(DEF); o.update(kw)
    dbg = o['dbg']
    a = Asm()
    NT = ' nt' if o['nt'] else ''
    sWAVE, sX8, sI, sH, sB3, sKC, sCH, sDQ, sMH, sTAG, sW, sF, sBUD = 3, 30, 31, 32, 33, 34, 35, 36, 37, 38, 48, 49, 50
    sMASK = 39
    sT0, sT1, sT2, sT3 = 51, 52, 53, 54
    sEP, sTAG32, sSC, sU, sGI, sHL = 55, 58, 59, 46, 47, 100
    SRD = 40
    sOFF, sCNT = 44, 45
    sTS = 60
    def stamp(k):
        if dbg: a(f's_memrealtime s[{sTS+2*k}:{sTS+2*k+1}]')
    def dump_stamps(n):
        if not dbg: return
        a('s_waitcnt lgkmcnt(0)')
        a('s_mov_b64 exec, 1')
        a(f's_mul_i32 s{sT0}, s2, 6')
        a(f's_add_u32 s{sT0}, s{sT0}, s{sWAVE}')
        a(f's_lshl_b32 s{sT0}, s{sT0}, 7')
        a(f's_add_u32 s{sT0}, s{sT0}, {WS_TS}')
        a(f'v_mov_b32 v8, s{sT0}')
        for k in range(n):
            a(f'v_mov_b32 v9, s{sTS+2*k}')
            a(f'global_store_dword v8, v9, s[28:29] offset:{4*k}')
    def setexec(mask):
        if mask == -1: a('s_mov_b64 exec, -1')
        elif 0 <= mask <= 64: a(f's_mov_b64 exec, {mask}')
        elif mask < (1 << 31): a(f's_mov_b64 exec, 0x{mask:x}')
        else:
            a(f's_mov_b32 exec_lo, 0x{mask & 0xffffffff:x}')
            a(f's_mov_b32 exec_hi, 0x{mask >> 32:x}')
    def budget():
        a(f's_sub_u32 s{sBUD}, s{sBUD}, 1')
        a('s_cbranch_scc1 L_end')
    vLANE, vL15, vG, vTAG, vSTG, vFL, vL16 = 1, 2, 3, 4, 5, 6, 7
    vT = 8
    vROW, vC4, vSWZ, vL1 = 26, 27, 28, 31
    def sexp(dst, terms, const=0):
        first = True
        for reg, f in terms:
            tgt = dst if first else sT1
            if f & (f - 1) == 0: a(f's_lshl_b32 s{tgt}, s{reg}, {int(math.log2(f))}')
            else: a(f's_mul_i32 s{tgt}, s{reg}, {f}')
            if not first: a(f's_add_u32 s{dst}, s{dst}, s{sT1}')
            first = False
        if const: a(f's_add_u32 s{dst}, s{dst}, {const}')
    def wait_prog(thr, slp=0):
        L = a.newlabel('L_wp')
        a.label(L)
        if slp: a(f's_sleep {slp}')
        budget()
        a(f'ds_read_b32 v{vT}, v{vFL}')
        a('s_waitcnt lgkmcnt(0)')
        a(f'v_readfirstlane_b32 s{sT0}, v{vT}')
        a(f's_cmp_ge_i32 s{sT0}, {thr}')
        a(f's_cbranch_scc0 {L}')
    def wait_all(k, extra=None, slp=0):
        L = a.newlabel('L_wa')
        a.label(L)
        if slp: a(f's_sleep {slp}')
        budget()
        a(f'ds_read_b128 v[{vT}:{vT+3}], v{vFL} offset:16')
        n = 0
        if extra:
            for e in extra: a(e)
            n = len(extra)
        a(f's_waitcnt lgkmcnt({min(n, 15)})')
        a(f'v_min_u32 v{vT}, v{vT}, v{vT+1}')
        a(f'v_min3_u32 v{vT}, v{vT}, v{vT+2}, v{vT+3}')
        a(f'v_readfirstlane_b32 s{sT0}, v{vT}')
        a(f's_cmp_ge_u32 s{sT0}, {k}')
        a(f's_cbranch_scc0 {L}')
    def wait_w0(k):
        L = a.newlabel('L_w0')
        a.label(L)
        budget()
        a(f'ds_read_b32 v{vT}, v{vFL} offset:16')
        a('s_waitcnt lgkmcnt(0)')
        a(f'v_readfirstlane_b32 s{sT0}, v{vT}')
        a(f's_cmp_ge_u32 s{sT0}, {k}')
        a(f's_cbranch_scc0 {L}')
    def stage(k):
        a(f'v_mov_b32 v{vT+4}, {k}')
        a(f'ds_write_b32 v{vSTG}, v{vT+4}')
    def untag(regs, acc):
        for r in regs: a(f'v_xor_b32 v{r}, v{r}, v{vTAG}')
        rs = list(regs)
        a(f'v_or3_b32 v{acc}, v{rs[0]}, v{rs[1]}, v{rs[2]}')
        i = 3
        while i < len(rs):
            if i + 1 < len(rs):
                a(f'v_or3_b32 v{acc}, v{acc}, v{rs[i]}, v{rs[i+1]}'); i += 2
            else:
                a(f'v_or_b32 v{acc}, v{acc}, v{rs[i]}'); i += 1
        a(f'v_and_b32 v{acc}, s{sMASK}, v{acc}')
        a(f'v_cmp_ne_u32 vcc, 0, v{acc}')
    def sentinel_poll(vaddr, mask):
        L = a.newlabel('L_sn')
        setexec(mask)
        a.label(L)
        budget()
        a(f'global_load_dword v{vT+5}, v{vaddr}, s[28:29] sc1')
        a('s_waitcnt vmcnt(0)')
        a(f'v_cmp_ne_u32 vcc, s{sTAG32}, v{vT+5}')
        a(f's_cbranch_vccnz {L}')
        setexec(-1)
    def sentinel_put(base, wave=None):
        L = None
        if wave is not None:
            L = a.newlabel('L_np')
            a(f's_cmp_lg_u32 s{sW}, {wave}')
            a(f's_cbranch_scc1 {L}')
        sexp(sT0, [(sX8, BLK), (sI, 128)], base)
        a(f'v_add_u32 v{vT+5}, s{sT0}, v{vL16}')
        a(f'v_mov_b32 v{vT}, s{sTAG32}')
        setexec(15)
        a(f'global_store_dwordx4 v{vT+5}, v[{vT}:{vT+3}], s[28:29] sc1')
        setexec(-1)
        if L: a.label(L)
    def bf16r(dst, src):
        a(f'v_cvt_pk_bf16_f32 v{dst}, v{src}, v{src}')
        a(f'v_and_b32 v{dst}, 0xffff0000, v{dst}')
    def allred_row(regs, op, shifts=(8, 4, 2, 1)):
        for sh in shifts:
            for r in regs:
                a(f'{op}_dpp v{r}, v{r}, v{r} row_ror:{sh} row_mask:0xf bank_mask:0xf')
    def allred_swap(regs, tmps, op, which):
        for r, t in zip(regs, tmps): a(f'v_mov_b32 v{t}, v{r}')
        for r, t in zip(regs, tmps): a(f'v_permlane{which}_swap_b32 v{r}, v{t}')
        for r, t in zip(regs, tmps): a(f'{op} v{r}, v{r}, v{t}')
    def mfs(d, x, y, c):
        cc = '0' if c is None else f'v[{c}:{c+3}]'
        return f'v_mfma_f32_16x16x32_bf16 v[{d}:{d+3}], v[{x}:{x+3}], v[{y}:{y+3}], {cc}'
    def MF(d, x, y, c): a(mfs(d, x, y, c))
    def TR(r, addr, off): a(f'ds_read_b64_tr_b16 v[{r}:{r+1}], v{addr} offset:{off}')
    vBP, vQ = 0, 29
    def tperm(dst, src):
        return [f'ds_bpermute_b32 v{dst+i}, v{vBP}, v{src+i}' for i in range(4)]
    def lane_consts():
        a(f'v_and_b32 v{vL15}, 15, v0')
        a(f'v_lshrrev_b32 v{vROW}, 2, v{vLANE}')
        a(f'v_and_b32 v{vC4}, 3, v{vLANE}')
        a(f'v_lshlrev_b32 v{vC4}, 3, v{vC4}')
        a(f'v_bfe_u32 v{vSWZ}, v{vLANE}, 3, 2')
        a(f'v_and_b32 v{vL1}, 1, v{vLANE}')
        a(f's_mov_b32 s{sMASK}, 0xfff')
        a(f'v_lshlrev_b32 v{vBP}, 3, v{vC4}')
        a(f'v_lshl_add_u32 v{vBP}, v{vROW}, 2, v{vBP}')
    def tags():
        a(f's_add_u32 s{sTAG32}, s{sEP}, 1')
        a(f's_and_b32 s{sTAG}, s{sTAG32}, 0xfff')
        a(f'v_mov_b32 v{vTAG}, s{sTAG}')
    def lsb_tags():
        for i, (sh, inv) in enumerate(((0, 0), (2, 0), (0, 1), (4, 0))):
            a(f's_lshr_b32 s{sT0}, s{sTAG32}, {sh}')
            if inv: a(f's_not_b32 s{sT0}, s{sT0}')
            a(f's_and_b32 s{sT1}, s{sT0}, 2')
            a(f's_lshl_b32 s{sT1}, s{sT1}, 15')
            a(f's_and_b32 s{sT0}, s{sT0}, 1')
            a(f's_or_b32 s{sT0}, s{sT0}, s{sT1}')
            a(f'v_mov_b32 v{20+i}, s{sT0}')

    M_LN = 0x0fffffff0fffffff
    X = 16
    stamp(0)
    a('s_load_dwordx16 s[4:19], s[0:1], 0')
    a('s_load_dwordx8 s[20:27], s[0:1], 64')
    a('s_load_dwordx2 s[28:29], s[0:1], 96')
    a('s_cmp_ge_u32 s2, 256')
    a('s_cbranch_scc1 L_end')
    a('s_getpc_b64 s[56:57]')
    a.label('L_pc')
    a('v_lshrrev_b32 v8, 6, v0')
    a(f's_lshr_b32 s{sI}, s2, 3')
    a(f's_mul_i32 s{sT0}, s{sI}, 768')
    a(f'v_lshl_add_u32 v9, v8, 7, s{sT0}')
    a('v_min_u32 v9, L_codeend-L_pc-4, v9')
    a('global_load_dword v250, v9, s[56:57]')
    a(f'v_and_b32 v{vLANE}, 63, v0')
    a(f'v_readfirstlane_b32 s{sWAVE}, v8')
    a(f's_and_b32 s{sX8}, s2, 7')
    a(f's_and_b32 s{sI}, s{sI}, 15')
    a(f's_and_b32 s{sU}, s2, 127')
    a(f's_lshr_b32 s{sT0}, s{sI}, 3')
    a(f's_lshl_b32 s{sH}, s{sX8}, 1')
    a(f's_add_u32 s{sH}, s{sH}, s{sT0}')
    a(f's_and_b32 s{sHL}, s{sH}, 7')
    a(f's_lshr_b32 s{sB3}, s{sX8}, 2')
    a(f's_and_b32 s{sDQ}, s{sI}, 3')
    a(f's_bfe_u32 s{sMH}, s{sI}, 0x10002')
    a(f's_mov_b32 s{sBUD}, 0x40000')
    a(f's_cmp_gt_u32 s{sI}, 3')
    a(f's_cselect_b32 s{sT0}, 8, 0')
    a(f's_sub_u32 s{sGI}, s{sU}, s{sT0}')
    a(f's_cmp_gt_u32 s{sI}, 7')
    a(f's_cselect_b32 s{sT0}, 8, 0')
    a(f's_sub_u32 s{sGI}, s{sGI}, s{sT0}')
    a(f's_and_b32 s{sT0}, s{sI}, 11')
    a(f's_cmp_eq_u32 s{sT0}, 3')
    a(f's_cselect_b32 s{sGI}, 127, s{sGI}')
    a(f'v_lshrrev_b32 v{vG}, 4, v{vLANE}')
    a(f'v_mov_b32 v{vFL}, {L_FL}')
    a(f'v_lshlrev_b32 v{vL16}, 4, v{vLANE}')
    a(f's_cmp_eq_u32 s{sWAVE}, 0')
    a('s_cbranch_scc1 L_loader')
    a(f's_sub_u32 s{sW}, s{sWAVE}, 1')
    a(f's_lshl_b32 s{sT0}, s{sW}, 2')
    a(f's_add_u32 s{sT0}, s{sT0}, {L_FL + 16}')
    a(f'v_mov_b32 v{vSTG}, s{sT0}')
    a('v_mov_b32 v8, 0')
    a(f'ds_write_b32 v{vSTG}, v8')
    a(f'v_lshrrev_b32 v9, 5, v{vLANE}')
    a('v_mul_u32_u24 v9, 896, v9')
    a(f'v_and_b32 v10, 31, v{vLANE}')
    a('v_lshl_add_u32 v10, v10, 5, v9')
    a(f's_lshr_b32 s{sT0}, s{sW}, 2')
    a(f's_lshr_b32 s{sT1}, s2, 7')
    a(f's_cmp_eq_u32 s{sT0}, s{sT1}')
    a('s_waitcnt lgkmcnt(0)')
    a(f's_load_dword s{sEP}, s[28:29], 0')
    a('s_cbranch_scc0 L_noln')
    a('global_load_ushort v24, v9, s[4:5]')
    setexec(M_LN)
    a(f'global_load_dwordx4 v[{X}:{X+3}], v10, s[4:5]')
    a(f'global_load_dwordx4 v[{X+4}:{X+7}], v10, s[4:5] offset:16')
    setexec(-1)
    a('s_barrier')
    a('s_branch L_ln')
    a.label('L_noln')
    a('s_barrier')
    a(f's_cmp_eq_u32 s{sWAVE}, 5')
    a('s_cbranch_scc1 L_aux2')
    a('s_branch L_comp1')

    a.label('L_loader')
    a('s_setprio 3')
    vC, vD0, vD1, vCNT, vPUB = 16, 17, 36, 18, 19
    vA = list(range(20, 28)); vE = list(range(28, 35))
    a(f'v_mov_b32 v{vPUB}, 0')
    a(f'ds_write_b32 v{vFL}, v{vPUB}')
    a(f'v_and_b32 v8, 7, v{vLANE}')
    a(f'v_lshlrev_b32 v9, 1, v{vG}')
    a('v_xor_b32 v8, v8, v9')
    a('v_lshlrev_b32 v8, 4, v8')
    a(f'v_lshrrev_b32 v9, 3, v{vLANE}')
    a(f'v_lshl_add_u32 v{vC}, v9, 13, v8')
    a(f's_lshl_b32 s{sT3}, s{sH}, 9')
    a(f's_lshl_b32 s{sT2}, s{sDQ}, 7')
    a(f's_add_u32 s{sT2}, s{sT2}, s{sT3}')
    a(f's_mov_b32 s{SRD+3}, 0x20000')
    a('s_cmp_ge_u32 s2, 128')
    a('s_cbranch_scc1 L_loader1')
    def run(voffs, n, step, th, unroll=1):
        P = len(voffs); g = P * unroll
        L = a.newlabel('L_ld')
        assert n % g == 0 and n > 0
        a(f's_mov_b32 s{sCNT}, {n // g}')
        a.label(L)
        for u in range(unroll):
            for k in range(P):
                a(f'buffer_load_dwordx4 v{voffs[k]}, s[{SRD}:{SRD+3}], s{sOFF} offen{NT} lds')
                a('s_add_u32 m0, m0, 1024')
                if k == P - 1: a(f's_add_u32 s{sOFF}, s{sOFF}, {step}')
        a(f'v_add_u32 v{vCNT}, {g}, v{vCNT}')
        a(f's_sub_u32 s{sCNT}, s{sCNT}, 1')
        a(f'v_max_i32 v{vPUB}, v{vPUB}, v{vCNT}')
        a(f's_waitcnt vmcnt({th})')
        a(f'ds_write_b32 v{vFL}, v{vPUB}')
        a(f's_cmp_lg_u32 s{sCNT}, 0')
        a(f's_cbranch_scc1 {L}')
    def drain(frm, to=0, gran=4):
        k = frm
        while k > to:
            d = min(gran, k - to); k -= d
            a(f'v_add_u32 v{vCNT}, {d}, v{vCNT}')
            a(f'v_max_i32 v{vPUB}, v{vPUB}, v{vCNT}')
            a(f's_waitcnt vmcnt({k})')
            a(f'ds_write_b32 v{vFL}, v{vPUB}')
    def srd(base, size):
        a(f's_mov_b32 s{SRD}, s{base}')
        a(f's_mov_b32 s{SRD+1}, s{base+1}')
        a(f's_mov_b32 s{SRD+2}, {size}')
    def pat896():
        for i in range(7):
            a(f'v_add_u32 v8, {64*i}, v{vLANE}')
            a('v_mul_u32_u24 v9, 586, v8')
            a('v_lshrrev_b32 v9, 16, v9')
            a('v_lshlrev_b32 v9, 1, v9')
            a('v_xor_b32 v8, v8, v9')
            a(f'v_lshlrev_b32 v{vE[i]}, 4, v8')
        for q in range(448): assert (q * 586) >> 16 == q // 112
    tha, thb = o['tha'], o['thb']
    a(f's_mul_i32 s{sOFF}, s{sMH}, {224*8192}')
    a(f's_add_u32 s{sOFF}, s{sOFF}, s{sT2}')
    a(f's_mov_b32 m0, {L2_W}')
    a(f'v_mov_b32 v{vCNT}, -28')
    a('s_waitcnt lgkmcnt(0)')
    srd(8, 3670016)
    a(f's_load_dword s{sEP}, s[28:29], 0')
    a('s_barrier')
    run([vC], 28, 8 * 8192, 28, unroll=4)
    stamp(1)
    a('s_branch L_loader2b')
    a.label('L_loader1')
    a(f'v_lshrrev_b32 v8, 5, v{vLANE}')
    a(f'v_and_b32 v9, 31, v{vLANE}')
    for i in range(4):
        a(f'v_add_u32 v10, {2*i}, v8')
        a('v_lshlrev_b32 v11, 1, v10')
        a('v_xor_b32 v11, v11, v9')
        a('v_lshlrev_b32 v11, 4, v11')
        a(f'v_lshl_add_u32 v{vA[i]}, v10, 13, v11')
    a(f's_and_b32 s{sOFF}, s{sI}, 7')
    a(f's_lshl_b32 s{sOFF}, s{sOFF}, 20')
    a(f's_add_u32 s{sOFF}, s{sOFF}, s{sT3}')
    a(f's_mov_b32 m0, {L1_WUK}')
    th1 = o['th1']
    a(f'v_mov_b32 v{vCNT}, {-th1}')
    a('s_waitcnt lgkmcnt(0)')
    srd(10, 8388608)
    a(f's_load_dword s{sEP}, s[28:29], 0')
    a('s_barrier')
    if o['n0']:
        a(f'v_mov_b32 v{vCNT}, {-o["th0"]}')
        run(vA[:4], o['n0'], 8 * 8192, o['th0'])
        a(f'v_subrev_u32 v{vCNT}, {th1 - o["th0"]}, v{vCNT}')
    run(vA[:4], 64 - o['n0'], 8 * 8192, th1)
    stamp(1)
    a('s_branch L_loader1b')

    a.label('L_ln')
    stamp(1)
    lane_consts()
    vA1, vB1 = 29, 30
    a(f'v_xor_b32 v{vA1}, s{sW}, v{vSWZ}')
    a(f'v_lshl_add_u32 v{vA1}, v{vA1}, 5, v{vC4}')
    a(f'v_lshl_add_u32 v{vA1}, v{vROW}, 7, v{vA1}')
    a(f'v_add_u32 v{vA1}, {L2_W}, v{vA1}')
    a(f'v_mul_u32_u24 v{vB1}, 896, v{vL1}')
    a(f'v_lshl_add_u32 v{vB1}, v{vG}, 3, v{vB1}')
    a(f'v_add_u32 v{vB1}, {L_XN}, v{vB1}')
    sexp(sT0, [(sHL, BLK), (sB3, 4096), (sMH, 2048), (sDQ, 256), (sW, 64)], WS_Q1)
    a(f'v_lshlrev_b32 v54, 10, v{vROW}')
    a(f'v_lshl_add_u32 v54, v{vC4}, 1, v54')
    a(f'v_add_u32 v54, s{sT0}, v54')
    a(f'v_add_u32 v25, {L_XN}, v10')
    for i in range(4): a(f'v_mov_b32 v{48+i}, 0')
    U = 32
    a('s_waitcnt vmcnt(0) lgkmcnt(0)')
    stamp(2)
    tags()
    a('v_lshlrev_b32 v24, 16, v24')
    for i in range(8):
        a(f'v_lshlrev_b32 v{U+2*i}, 16, v{X+i}')
        a(f'v_and_b32 v{U+2*i+1}, 0xffff0000, v{X+i}')
    setexec(M_LN)
    for i in range(8):
        t = 52 + 4 * (i & 1)
        t = 52 if i & 1 else 56
        a(f'v_pk_add_f32 v[{t}:{t+1}], v[{U+2*i}:{U+2*i+1}], v[24:25] op_sel_hi:[1,0] neg_lo:[0,1] neg_hi:[0,1]')
        if i > 0:
            tp_ = 52 if (i - 1) & 1 else 56
            a(f'v_pk_add_f32 v[48:49], v[48:49], v[{tp_}:{tp_+1}]')
            a(f'v_pk_fma_f32 v[50:51], v[{tp_}:{tp_+1}], v[{tp_}:{tp_+1}], v[50:51]')
    a('v_pk_add_f32 v[48:49], v[48:49], v[52:53]')
    a('v_pk_fma_f32 v[50:51], v[52:53], v[52:53], v[50:51]')
    setexec(-1)
    a('v_add_f32 v48, v48, v49')
    a('v_add_f32 v50, v50, v51')
    allred_row([48, 50], 'v_add_f32')
    allred_swap([48, 50], [49, 51], 'v_add_f32', 16)
    a(f'v_mul_f32 v48, {f32(1.0/448)}, v48')
    a(f'v_mul_f32 v50, {f32(1.0/448)}, v50')
    a('v_fma_f32 v50, -v48, v48, v50')
    a('v_add_f32 v48, v48, v24')
    a('v_max_f32 v50, 0, v50')
    bf16r(48, 48)
    bf16r(50, 50)
    a(f'v_add_f32 v50, {f32(1e-5)}, v50')
    bf16r(50, 50)
    a('v_sqrt_f32 v50, v50')
    for i in range(8):
        a(f'v_pk_add_f32 v[{U+2*i}:{U+2*i+1}], v[{U+2*i}:{U+2*i+1}], v[48:49] op_sel_hi:[1,0] neg_lo:[0,1] neg_hi:[0,1]')
    bf16r(50, 50)
    a('v_rcp_f32 v50, v50')
    for i in range(8): a(f'v_cvt_pk_bf16_f32 v{X+i}, v{U+2*i}, v{U+2*i+1}')
    for i in range(8):
        a(f'v_lshlrev_b32 v{U+2*i}, 16, v{X+i}')
        a(f'v_and_b32 v{U+2*i+1}, 0xffff0000, v{X+i}')
    for i in range(8):
        a(f'v_pk_mul_f32 v[{U+2*i}:{U+2*i+1}], v[{U+2*i}:{U+2*i+1}], v[50:51] op_sel_hi:[1,0]')
    for i in range(8): a(f'v_cvt_pk_bf16_f32 v{X+i}, v{U+2*i}, v{U+2*i+1}')
    setexec(M_LN)
    a(f'ds_write_b128 v25, v[{X}:{X+3}]')
    a(f'ds_write_b128 v25, v[{X+4}:{X+7}] offset:16')
    setexec(-1)
    a(f's_cmp_eq_u32 s{sWAVE}, 5')
    a('s_cbranch_scc1 L_aux1')

    XB = 64
    a(f's_mul_i32 s{sT0}, s{sMH}, 448')
    a(f'v_add_u32 v{vB1}, s{sT0}, v{vB1}')
    for s in range(7):
        a(f'ds_read2_b64 v[{XB+4*s}:{XB+4*s+3}], v{vB1} offset0:{8*s} offset1:{8*s+4}')
    stamp(3)
    wait_prog(28)
    WA = 96
    for s in range(7):
        TR(WA + 4 * s, vA1, (32 * s) * 128)
        TR(WA + 4 * s + 2, vA1, (32 * s + 16) * 128)
    D = 32
    for s in range(7):
        a(f's_waitcnt lgkmcnt({12 - 2 * s})')
        MF(D, WA + 4 * s, XB + 4 * s, None if s == 0 else D)
    stage(A_P1)
    for i in range(4): a(f'v_bfi_b32 v{D+i}, s{sMASK}, v{vTAG}, v{D+i}')
    for x in tperm(D + 4, D): a(x)
    a('s_waitcnt lgkmcnt(0)')
    setexec(0xff)
    a(f'global_store_dwordx4 v54, v[{D+4}:{D+7}], s[28:29] sc1')
    setexec(-1)
    stamp(4)
    a(f's_and_b32 s{sKC}, s{sX8}, 3')
    a(f's_lshl_b32 s{sKC}, s{sKC}, 3')
    a(f's_lshr_b32 s{sT0}, s{sI}, 1')
    a(f's_add_u32 s{sKC}, s{sKC}, s{sT0}')
    a(f's_and_b32 s{sCH}, s{sI}, 1')
    a(f's_mov_b32 s{sSC}, {f32(LOG2E/16)}')
    lsb_tags()
    vOWP, vSTP = 24, 25
    sexp(sT0, [(sB3, 1 << 20), (sCH, 1 << 15), (sW, 1 << 13), (sKC, 256)], WS_OW)
    a(f'v_lshlrev_b32 v{vOWP}, 16, v{vROW}')
    a(f'v_lshl_add_u32 v{vOWP}, v{vC4}, 1, v{vOWP}')
    a(f'v_add_u32 v{vOWP}, s{sT0}, v{vOWP}')
    sexp(sT0, [(sX8, BLK), (sI, 256)], WS_ST)
    a(f'v_add_u32 v{vSTP}, s{sT0}, v{vL16}')
    a(f'v_and_b32 v8, 7, v{vLANE}')
    a('v_lshlrev_b32 v8, 1, v8')
    a(f's_lshl_b32 s{sT0}, s{sW}, 14')
    for s3 in range(4):
        a(f'v_add_u32 v9, {4*s3}, v{vG}')
        a('v_xor_b32 v9, v9, v8')
        a('v_lshlrev_b32 v9, 4, v9')
        a(f'v_lshl_add_u32 v9, v{vL15}, 10, v9')
        a(f'v_add_u32 v{40+s3}, {L2_QF}, v9')
        a(f'v_add_u32 v{44+s3}, s{sT0}, v9')
    a(f's_and_b32 s{sT2}, s{sW}, 1')
    a(f's_lshr_b32 s{sT3}, s{sW}, 1')
    sexp(sT0, [(sT2, 4 * BLK), (sT3, 8192), (sB3, 4096), (sCH, 2048)], WS_QA)
    a(f'v_add_u32 v48, s{sT0}, v{vL16}')
    for i in range(1, 4): a(f'v_add_u32 v{48+i}, {BLK*i}, v48')
    a(f'v_lshrrev_b32 v8, 1, v{vLANE}')
    for i in range(4):
        a(f's_lshl_b32 s{sT0}, s{sW}, 2')
        a(f's_add_u32 s{sT0}, s{sT0}, {i}')
        a(f's_and_b32 s{sT1}, s{sT0}, 7')
        a(f's_lshl_b32 s{sT1}, s{sT1}, 1')
        a(f'v_xor_b32 v9, s{sT1}, v8')
        a('v_lshlrev_b32 v9, 4, v9')
        a(f'v_lshl_add_u32 v9, v{vL1}, 3, v9')
        a(f's_lshl_b32 s{sT0}, s{sT0}, 10')
        a(f's_add_u32 s{sT0}, s{sT0}, {L2_QF}')
        a(f'v_add_u32 v{52+i}, s{sT0}, v9')
    a(f's_lshl_b32 s{sT0}, s{sW}, 2')
    a(f'v_lshrrev_b32 v8, 2, v{vL15}')
    a(f'v_add_u32 v8, s{sT0}, v8')
    a('v_and_b32 v9, 1, v8')
    a('v_lshlrev_b32 v9, 3, v9')
    a(f'v_and_b32 v10, 3, v{vL15}')
    a('v_add_u32 v9, v9, v10')
    a(f's_lshl_b32 s{sT0}, s{sCH}, 2')
    a(f'v_add_u32 v9, s{sT0}, v9')
    a('v_lshrrev_b32 v8, 1, v8')
    a('v_lshlrev_b32 v8, 18, v8')
    a('v_lshl_add_u32 v56, v9, 7, v8')
    a(f'v_add_u32 v56, {WS_SN2}, v56')
    sexp(sT0, [(sX8, BLK), (sI, 8192), (sW, 2048)], WS_SX)
    a(f'v_add_u32 v57, s{sT0}, v{vL16}')
    a('v_xor_b32 v58, 0x2000, v57')
    a(f's_xor_b32 s{sT2}, s{sI}, 1')
    sexp(sT0, [(sX8, BLK), (sT2, 128)], WS_SN25)
    a(f'v_mov_b32 v59, s{sT0}')
    a(f'v_lshlrev_b32 v61, 4, v{vL15}')
    a(f'v_add_u32 v61, {L2_MX}, v61')
    a(f's_lshl_b32 s{sT0}, s{sW}, 2')
    a(f'v_add_u32 v60, s{sT0}, v61')
    a(f'v_add_u32 v63, {L2_P}, v{vL16}')
    a(f's_lshl_b32 s{sT0}, s{sW}, 10')
    a(f'v_add_u32 v62, s{sT0}, v63')
    G = 64; CA = 96; QF = 160; SD = 32
    wait_prog(o['h2at'])
    a('s_branch L_h2_first')
    a.label('L_h2')
    sentinel_poll(56, 0xffff)
    a.label('L_h2_first')
    stamp(5)
    budget()
    for i in range(4):
        a(f'global_load_dwordx4 v[{G+8*i}:{G+8*i+3}], v{48+i}, s[28:29] sc1')
        a(f'global_load_dwordx4 v[{G+8*i+4}:{G+8*i+7}], v{48+i}, s[28:29] offset:1024 sc1')
    a(f's_lshl_b32 s{sT2}, s{sW}, 4')
    a(f's_add_u32 s{sT2}, s{sT2}, 44')
    wait_prog(f's{sT2}')
    for s in range(16):
        a(f'ds_read_b128 v[{CA+4*s}:{CA+4*s+3}], v{44 + (s & 3)} offset:{(s >> 2) * 256}')
    a('s_waitcnt vmcnt(0)')
    untag(range(G, G + 32), 16)
    a('s_cbranch_vccnz L_h2')
    stamp(6)
    for i in range(16): a(f'v_cvt_pk_bf16_f32 v{G+i}, v{G+2*i}, v{G+2*i+1}')
    wait_all(A_P1)
    for i in range(4):
        a(f'ds_write_b64 v{52+i}, v[{G+4*i}:{G+4*i+1}]')
        a(f'ds_write_b64 v{52+i}, v[{G+4*i+2}:{G+4*i+3}] offset:512')
    stage(A_QA)
    wait_all(A_QA, extra=[f'ds_read_b128 v[{QF+4*s}:{QF+4*s+3}], v{40 + (s & 3)} offset:{(s >> 2) * 256}' for s in range(8)])
    for s in range(8, 16):
        a(f'ds_read_b128 v[{QF+4*s}:{QF+4*s+3}], v{40 + (s & 3)} offset:{(s >> 2) * 256}')
    for s3 in range(4): a(f'v_add_u32 v{44+s3}, 0x10000, v{44+s3}')
    for s in range(16):
        a(f's_waitcnt lgkmcnt({15 - s})')
        MF(SD, CA + 4 * s, QF + 4 * s, None if s == 0 else SD)
    a(f's_add_u32 s{sT2}, s{sT2}, 64')
    wait_prog(f's{sT2}')
    stamp(7)
    for s in range(16):
        a(f'ds_read_b128 v[{CA+4*s}:{CA+4*s+3}], v{44 + (s & 3)} offset:{(s >> 2) * 256}')
    sentinel_put(WS_SN25, wave=3)
    for i in range(4): a(f'v_bfi_b32 v{G+i}, s{sMASK}, v{vTAG}, v{SD+i}')
    a(f'global_store_dwordx4 v57, v[{G}:{G+3}], s[28:29] sc1')
    for s in range(16):
        a(f's_waitcnt lgkmcnt({15 - s})')
        MF(SD + 4, CA + 4 * s, QF + 4 * s, None if s == 0 else SD + 4)
    a(f'v_and_b32 v8, 7, v{vROW}')
    a(f'v_lshl_add_u32 v9, v{vROW}, 10, v{vC4}')
    a(f's_lshl_b32 s{sT0}, s{sW}, 8')
    a(f'v_add_u32 v9, s{sT0}, v9')
    for t in range(2):
        a(f'v_xor_b32 v10, {t}, v8')
        a(f'v_lshl_add_u32 v{40+t}, v10, 5, v9')
    for i in range(4): a(f'v_bfi_b32 v{G+4+i}, s{sMASK}, v{vTAG}, v{SD+4+i}')
    a(f'global_store_dwordx4 v57, v[{G+4}:{G+7}], s[28:29] offset:1024 sc1')
    stamp(8)
    for t in range(2, 8):
        a(f'v_xor_b32 v10, {t}, v8')
        a(f'v_lshl_add_u32 v{40+t}, v10, 5, v9')
    wait_prog(156)
    PA = 96
    for ct in range(8):
        for ks in range(4): TR(PA + 16 * ct + 4 * ks, 40 + ct, ks * 16384)
    for ct in range(8): a(f'v_add_u32 v{40+ct}, 0x10000, v{40+ct}')
    for ct in range(8):
        for ks in range(4): TR(PA + 16 * ct + 4 * ks + 2, 40 + ct, ks * 16384)
    sentinel_poll(59, 1)
    stamp(9)
    a.label('L_h25')
    budget()
    a(f'global_load_dwordx4 v[{G}:{G+3}], v58, s[28:29] sc1')
    a(f'global_load_dwordx4 v[{G+4}:{G+7}], v58, s[28:29] offset:1024 sc1')
    a('s_waitcnt lgkmcnt(0)')
    stage(A_H25)
    a('s_waitcnt vmcnt(0)')
    untag(range(G, G + 8), 16)
    a('s_cbranch_vccnz L_h25')
    stamp(10)
    for i in range(0, 8, 2): a(f'v_pk_add_f32 v[{SD+i}:{SD+i+1}], v[{SD+i}:{SD+i+1}], v[{G+i}:{G+i+1}]')
    a(f'v_max3_f32 v16, v{SD}, v{SD+1}, v{SD+2}')
    a(f'v_max3_f32 v17, v{SD+3}, v{SD+4}, v{SD+5}')
    a(f'v_max3_f32 v16, v16, v{SD+6}, v{SD+7}')
    a('v_max_f32 v16, v16, v17')
    allred_swap([16], [17], 'v_max_f32', 16)
    allred_swap([16], [17], 'v_max_f32', 32)
    a(f'v_mul_f32 v16, s{sSC}, v16')
    a('v_ceil_f32 v16, v16')
    a('ds_write_b32 v60, v16')
    for i in range(8): a(f'v_fma_f32 v{SD+i}, v{SD+i}, s{sSC}, -v16')
    for i in range(8): a(f'v_exp_f32 v{SD+i}, v{SD+i}')
    for i in range(4): a(f'v_cvt_pk_bf16_f32 v{G+i}, v{SD+2*i}, v{SD+2*i+1}')
    a(f'ds_write_b128 v62, v[{G}:{G+3}]')
    stage(A_P)
    PB = 72
    wait_all(A_P, extra=['ds_read_b128 v[16:19], v61'] + [f'ds_read_b128 v[{PB+4*ks}:{PB+4*ks+3}], v63 offset:{ks*1024}' for ks in range(4)])
    sentinel_put(WS_SN3, wave=1)
    a('s_waitcnt lgkmcnt(4)')
    a('v_max_f32 v32, v16, v17')
    a('v_max3_f32 v32, v32, v18, v19')
    for ks in range(4): a(f'v_sub_f32 v{16+ks}, v32, v{16+ks}')
    for ks in range(4): a(f'v_min_f32 v{16+ks}, 0x437f0000, v{16+ks}')
    for ks in range(4): a(f'v_cvt_u32_f32 v{16+ks}, v{16+ks}')
    for ks in range(4): a(f'v_mul_u32_u24 v{16+ks}, 0x800080, v{16+ks}')
    for ks in range(4):
        a(f's_waitcnt lgkmcnt({3-ks})')
        for i in range(4): a(f'v_pk_sub_u16 v{PB+4*ks+i}, v{PB+4*ks+i}, v{16+ks} clamp')
    OD = 224
    a(f's_mov_b32 s{sT2}, 0x07060302')
    a(f's_mov_b32 s{sT3}, 0x00010001')
    def epi(tp):
        b = OD + 8 * tp; r = 88 + 4 * (tp & 1)
        out = [f'v_add_u32 v{b+i}, 0x10000, v{b+i}' for i in range(8)]
        out += [f'v_perm_b32 v{r+i}, v{b+2*i+1}, v{b+2*i}, s{sT2}' for i in range(4)]
        out += [f'v_bfi_b32 v{r+i}, s{sT3}, v{20+i}, v{r+i}' for i in range(4)]
        out += tperm(b, r)
        return out
    def epi2(tp):
        b = OD + 8 * tp
        return ['s_waitcnt lgkmcnt(0)', f'global_store_dwordx4 v{vOWP}, v[{b}:{b+3}], s[28:29] offset:{64*tp} sc1']
    pend = []
    for tp in range(4):
        k = 0
        for ks in range(4):
            for c2 in range(2):
                ct = 2 * tp + c2
                MF(OD + 4 * ct, PA + 16 * ct + 4 * ks, PB + 4 * ks, None if ks == 0 else OD + 4 * ct)
                k += 1
                if k == 2 and tp >= 2:
                    for x in epi2(tp - 2): a(x)
                if k >= 3:
                    for _ in range(4):
                        if pend: a(pend.pop(0))
        assert not pend
        pend = epi(tp)
    for x in epi2(2): a(x)
    a(f's_cmp_lg_u32 s{sW}, 0')
    a('s_cbranch_scc1 L_nol')
    for i in range(4): a(f'v_mov_b32 v{16+i}, 0x3f803f80')
    for ks in range(4): MF(36, 16, PB + 4 * ks, None if ks == 0 else 36)
    a.label('L_nol')
    for x in pend + epi2(3): a(x)
    a(f's_cmp_lg_u32 s{sW}, 0')
    a('s_cbranch_scc1 L_nost')
    a('v_mov_b32 v33, v36')
    a(f'v_mov_b32 v34, s{sTAG32}')
    a(f'v_not_b32 v35, s{sTAG32}')
    setexec(0xffff)
    a(f'global_store_dwordx4 v{vSTP}, v[32:35], s[28:29] sc1')
    setexec(-1)
    a.label('L_nost')
    stage(A_O)
    stamp(11)
    a(f's_sub_u32 s{sT2}, s{sU}, 64')
    a(f's_cmp_lt_u32 s{sT2}, 56')
    a('s_cbranch_scc0 L_cdone2')
    sexp(sT0, [(sX8, BLK), (sI, 8192), (sW, 2048)], WS_SP - 8 * 8192)
    a(f'v_add_u32 v80, s{sT0}, v{vL16}')
    sexp(sT0, [(sW, 64)], L2_FIN)
    a(f'v_add_u32 v81, s{sT0}, v{vL16}')
    sexp(sT0, [(sW, 512)], WS_SN5)
    a(f'v_and_b32 v82, 7, v{vLANE}')
    a('v_lshlrev_b32 v82, 18, v82')
    a(f'v_lshrrev_b32 v9, 3, v{vLANE}')
    a('v_lshl_add_u32 v82, v9, 7, v82')
    a(f'v_add_u32 v82, s{sT0}, v82')
    sentinel_poll(82, 0xffffffff)
    stamp(12)
    a.label('L_h5')
    budget()
    for i in range(2):
        a(f'global_load_dwordx4 v[{32+4*i}:{32+4*i+3}], v80, s[28:29] offset:{1024*i} sc1')
    a('s_waitcnt vmcnt(0)')
    untag(range(32, 40), 48)
    a('s_cbranch_vccnz L_h5')
    stamp(13)
    for i in range(4): a(f'v_add_f32 v{32+i}, v{32+i}, v{36+i}')
    allred_row([32, 33, 34, 35], 'v_add_f32', shifts=(4, 8))
    allred_swap([32, 33, 34, 35], [36, 37, 38, 39], 'v_add_f32', 16)
    allred_swap([32, 33, 34, 35], [36, 37, 38, 39], 'v_add_f32', 32)
    setexec(15)
    a('ds_write_b128 v81, v[32:35]')
    setexec(-1)
    stage(A_FIN)
    a.label('L_cdone2')
    stamp(14)
    dump_stamps(15)
    a('s_endpgm')

    a.label('L_comp1')
    stamp(1)
    lane_consts()
    a(f's_mov_b32 s{sF}, 0')
    a(f's_cmp_lt_u32 s{sGI}, 98')
    a(f's_cselect_b32 s{sF}, 32, 0')
    sexp(sT0, [(sHL, BLK), (sB3, 4096), (sW, 512)], WS_Q1)
    a(f'v_lshrrev_b32 v55, 5, v{vLANE}')
    a('v_lshlrev_b32 v55, 11, v55')
    a(f'v_and_b32 v56, 31, v{vLANE}')
    a('v_lshl_add_u32 v55, v56, 4, v55')
    a(f'v_add_u32 v55, s{sT0}, v55')
    sexp(sT0, [(sW, 256)], L1_Q)
    a('v_lshlrev_b32 v56, 3, v56')
    a(f'v_add_u32 v56, s{sT0}, v56')
    a(f'v_and_b32 v8, 7, v{vLANE}')
    a('v_lshlrev_b32 v8, 1, v8')
    a(f's_lshl_b32 s{sT0}, s{sW}, 14')
    for s3 in range(4):
        a(f'v_add_u32 v9, {4*s3}, v{vG}')
        a('v_xor_b32 v9, v9, v8')
        a('v_lshlrev_b32 v9, 4, v9')
        a(f'v_lshl_add_u32 v10, v{vL15}, 9, v9')
        a(f'v_add_u32 v{84+s3}, s{sT0}, v10')
        a(f'v_lshl_add_u32 v10, v{vL15}, 8, v9')
        a(f'v_add_u32 v{92+s3}, s{sT0}, v10')
    a(f'v_lshlrev_b32 v88, 9, v{vL1}')
    a(f'v_lshl_add_u32 v88, v{vG}, 4, v88')
    a(f'v_add_u32 v88, {L1_Q}, v88')
    a(f's_and_b32 s{sT2}, s{sI}, 7')
    sexp(sT0, [(sHL, BLK), (sB3, 8192), (sT2, 512), (sW, 128)], WS_QA)
    a(f'v_bfe_u32 v9, v{vLANE}, 2, 1')
    a('v_lshlrev_b32 v89, 12, v9')
    a(f'v_lshl_add_u32 v89, v{vC4}, 1, v89')
    a(f'v_bfe_u32 v9, v{vLANE}, 3, 1')
    a('v_lshl_add_u32 v89, v9, 6, v89')
    a(f'v_add_u32 v89, s{sT0}, v89')
    a('s_waitcnt lgkmcnt(0)')
    tags()
    lsb_tags()
    G = 60; KA = 96; QB = 160; D = 72
    wait_prog(o['h1at'])
    stamp(2)
    a.label('L_h1')
    budget()
    a(f'global_load_dwordx4 v[{G}:{G+3}], v55, s[28:29] sc1')
    if o['h1at'] < 64: wait_prog(64)
    for t in range(2):
        for s in range(8):
            r = KA + 32 * t + 4 * s
            a(f'ds_read_b128 v[{r}:{r+3}], v{84 + (s & 3)} offset:{t * 8192 + (s >> 2) * 256}')
    a('s_waitcnt vmcnt(0)')
    untag(range(G, G + 4), 68)
    a('s_cbranch_vccnz L_h1')
    stamp(3)
    allred_swap([G, G+1, G+2, G+3], [G+4, G+5, G+6, G+7], 'v_add_f32', 32)
    a(f'v_cvt_pk_bf16_f32 v{G}, v{G}, v{G+1}')
    a(f'v_cvt_pk_bf16_f32 v{G+1}, v{G+2}, v{G+3}')
    a(f'ds_write_b64 v56, v[{G}:{G+1}]')
    stage(W_Q)
    wait_all(W_Q, extra=[f'ds_read_b128 v[{QB+4*s}:{QB+4*s+3}], v88 offset:{s * 64}' for s in range(8)])
    for s in range(8):
        a(f's_waitcnt lgkmcnt({7 - s})')
        for t in range(2): MF(D + 4 * t, KA + 32 * t + 4 * s, QB + 4 * s, None if s == 0 else D + 4 * t)
    stage(W_FREE)
    for t in range(2):
        setexec(M_C01 << (2 * t))
        for i in range(4): a(f'v_bfi_b32 v{G+i}, s{sMASK}, v{vTAG}, v{D+4*t+i}')
    setexec(-1)
    for x in tperm(G + 4, G): a(x)
    a('s_waitcnt lgkmcnt(0)')
    setexec(0xffff)
    a(f'global_store_dwordx4 v89, v[{G+4}:{G+7}], s[28:29] sc1')
    setexec(-1)
    sentinel_put(WS_SN2, wave=0)
    stamp(4)
    sexp(sT0, [(sW, 1 << 14)], 0)
    a(f'v_lshl_add_u32 v9, v{vROW}, 7, v{vC4}')
    a(f'v_add_u32 v9, s{sT0}, v9')
    for t in range(4):
        a(f'v_xor_b32 v10, {t}, v{vSWZ}')
        a(f'v_lshl_add_u32 v{84+t}, v10, 5, v9')
    a(f'v_mul_u32_u24 v9, 896, v{vROW}')
    a(f'v_add_u32 v9, v9, v{vC4}')
    a(f'v_add_u32 v9, {L1_WO}, v9')
    for tp in range(7):
        a(f's_mul_i32 s{sT0}, s{sW}, 7')
        a(f's_add_u32 s{sT0}, s{sT0}, {tp}')
        a(f'v_xor_b32 v10, s{sT0}, v{vSWZ}')
        a(f'v_lshl_add_u32 v{72+tp}, v10, 5, v9')
    sexp(sT0, [(sH, 1 << 16), (sMH, 1 << 15), (sW, 1 << 13)], WS_OW)
    a(f'v_lshlrev_b32 v9, 5, v{vG}')
    a(f'v_xor_b32 v80, v9, v{vL16}')
    a('v_xor_b32 v81, 128, v80')
    a(f'v_add_u32 v80, s{sT0}, v80')
    a(f'v_add_u32 v81, s{sT0}, v81')
    sexp(sT0, [(sMH, 256), (sH, 16)], WS_ST)
    a(f'v_lshrrev_b32 v82, 3, v{vLANE}')
    a('v_lshlrev_b32 v82, 18, v82')
    a(f'v_and_b32 v9, 7, v{vLANE}')
    a('v_lshl_add_u32 v82, v9, 9, v82')
    a(f'v_add_u32 v82, s{sT0}, v82')
    a(f'v_lshlrev_b32 v83, 1, v{vLANE}')
    a(f'v_add_u32 v83, {L1_WT}, v83')
    a(f'v_lshlrev_b32 v88, 6, v{vL1}')
    a(f'v_lshl_add_u32 v88, v{vG}, 3, v88')
    a(f'v_add_u32 v88, {L1_WT}, v88')
    sexp(sT0, [(sW, 512)], L1_CTX)
    a(f'v_lshlrev_b32 v89, 6, v{vL15}')
    a(f'v_lshl_add_u32 v89, v{vG}, 4, v89')
    a(f'v_add_u32 v89, s{sT0}, v89')
    a(f'v_bfe_u32 v90, v{vLANE}, 1, 2')
    a('v_lshlrev_b32 v90, 9, v90')
    a(f'v_lshl_add_u32 v90, v{vL1}, 6, v90')
    a(f'v_lshl_add_u32 v90, v{vG}, 4, v90')
    a(f'v_add_u32 v90, {L1_CTX}, v90')
    a(f'v_bfe_u32 v9, v{vLANE}, 2, 1')
    a('v_mul_u32_u24 v91, 28, v9')
    a(f'v_lshrrev_b32 v9, 3, v{vLANE}')
    a('v_add_u32 v91, v91, v9')
    a(f's_mul_i32 s{sT0}, s{sW}, 7')
    a(f'v_add_u32 v9, s{sT0}, v91')
    a('v_and_b32 v91, 7, v9')
    a('v_lshlrev_b32 v91, 18, v91')
    a('v_lshrrev_b32 v9, 3, v9')
    a('v_lshl_add_u32 v91, v9, 13, v91')
    a(f'v_lshl_add_u32 v91, v{vC4}, 1, v91')
    sexp(sT0, [(sU, 64)], WS_SP)
    a(f'v_add_u32 v91, s{sT0}, v91')
    a(f's_lshl_b32 s{sT0}, s{sW}, 4')
    a(f'v_add_u32 v8, s{sT0}, v{vL15}')
    a('v_and_b32 v9, 7, v8')
    a('v_lshlrev_b32 v9, 1, v9')
    a(f'v_add_u32 v9, s{sMH}, v9')
    a('v_lshrrev_b32 v8, 3, v8')
    a('v_lshlrev_b32 v8, 18, v8')
    a('v_lshl_add_u32 v79, v9, 7, v8')
    a(f'v_add_u32 v79, {WS_SN3}, v79')
    WB = 224
    for i in range(0, 32, 2): a(f'v_mov_b64 v[{WB+i}:{WB+i+1}], 0')
    a(f's_lshl_b32 s{sT3}, s{sW}, 14')
    UV = 96
    a(f's_add_u32 s{sT2}, s{sF}, 128')
    wait_prog(f's{sT2}', slp=1)
    stamp(5)
    for tp in range(4):
        for nt_ in range(4):
            TR(UV + 16 * tp + 4 * nt_, 84 + nt_, (32 * tp) * 128)
            TR(UV + 16 * tp + 4 * nt_ + 2, 84 + nt_, (32 * tp + 16) * 128)
    sentinel_poll(79, 0xffff)
    stage(W_S3)
    wait_all(W_S3)
    stamp(6)
    D1 = 160
    a.label('L_h3')
    budget()
    a(f'v_mov_b32 v66, s{sTAG32}')
    a(f'v_not_b32 v67, s{sTAG32}')
    a(f's_cmp_lg_u32 s{sW}, 0')
    a('s_cbranch_scc1 L_nostl')
    a('global_load_dwordx4 v[64:67], v82, s[28:29] sc1')
    a.label('L_nostl')
    for T in range(4):
        a(f's_add_u32 m0, s{sT3}, {T * 4096}')
        goff = (T >> 1) * (1 << 20) + (T & 1) * 4096
        if T == 0:
            a('v_mov_b32 v70, v80'); a('v_mov_b32 v71, v81')
        else:
            a(f'v_add_u32 v70, {goff}, v80'); a(f'v_add_u32 v71, {goff}, v81')
        for i in range(4):
            a(f'global_load_lds_dwordx4 v{70 + (i & 1)}, s[28:29] offset:{i*1024} sc1')
    stage(W_H3)
    a('v_mov_b32 v68, 0')
    a(f's_cmp_lg_u32 s{sW}, 0')
    a('s_cbranch_scc1 L_nowt')
    a('s_waitcnt vmcnt(16)')
    a(f'v_xor_b32 v66, s{sTAG32}, v66')
    a(f'v_xnor_b32 v67, s{sTAG32}, v67')
    a('v_or_b32 v66, v66, v67')
    a('v_cmp_ne_u32 vcc, 0, v66')
    a('s_cbranch_vccnz L_h3')
    a('v_mov_b32 v66, v64')
    allred_row([66], 'v_max_f32')
    allred_swap([66], [67], 'v_max_f32', 16)
    a('v_sub_f32 v64, v64, v66')
    a('v_exp_f32 v64, v64')
    a('v_mul_f32 v65, v64, v65')
    allred_row([65], 'v_add_f32')
    allred_swap([65], [67], 'v_add_f32', 16)
    a('v_rcp_f32 v65, v65')
    a('v_mul_f32 v64, v64, v65')
    a('v_cvt_pk_bf16_f32 v64, v64, v64')
    a('ds_write_b16 v83, v64')
    stage(W_WT)
    a.label('L_nowt')
    def cvt_b(b, base):
        out = []
        for nt_ in range(4):
            r = base + 4 * nt_
            for hf in range(2):
                d = D1 + 16 * (2 * b + hf) + 4 * nt_
                out.append(f'v_cvt_pk_bf16_f32 v{r+2*hf}, v{d}, v{d+1}')
                out.append(f'v_cvt_pk_bf16_f32 v{r+2*hf+1}, v{d+2}, v{d+3}')
        return out
    for T in range(4):
        OA = 32 + 16 * (T & 1)
        a(f's_waitcnt vmcnt({12 - 4 * T})')
        for tp in range(4):
            a(f'ds_read_b128 v[{OA+4*tp}:{OA+4*tp+3}], v{92+tp} offset:{T * 4096}')
        for tp in range(4):
            a(f's_waitcnt lgkmcnt({3 - tp})')
            for i in range(4): a(f'v_xor_b32 v{OA+4*tp+i}, v{OA+4*tp+i}, v{20+i}')
            a(f'v_or3_b32 v68, v68, v{OA+4*tp}, v{OA+4*tp+1}')
            a(f'v_or3_b32 v68, v68, v{OA+4*tp+2}, v{OA+4*tp+3}')
            for nt_ in range(4):
                d = D1 + 16 * T + 4 * nt_
                MF(d, OA + 4 * tp, UV + 16 * tp + 4 * nt_, None if tp == 0 else d)
    a('v_and_b32 v68, 0x00010001, v68')
    a('v_cmp_ne_u32 vcc, 0, v68')
    a('s_cbranch_vccnz L_h3r')
    stamp(7)
    wait_w0(W_WT)
    for u in range(8):
        setexec(0x0001000100010001 << u)
        a(f'ds_read2_b64 v[{WB+4*u}:{WB+4*u+3}], v88 offset0:0 offset1:4')
    setexec(-1)
    for x in cvt_b(0, 32) + cvt_b(1, 48): a(x)
    a('s_waitcnt lgkmcnt(0)')
    first = True
    for b in range(2):
        for nt_ in range(4):
            MF(64, 32 + 16 * b + 4 * nt_, WB + 4 * (2 * nt_ + b), None if first else 64)
            first = False
    setexec(0x00ff00ff00ff00ff)
    a('ds_write_b128 v89, v[64:67]')
    setexec(-1)
    stage(W_CTX)
    stamp(8)
    a(f's_add_u32 s{sT2}, s{sF}, 184')
    wait_prog(f's{sT2}')
    WO = 96
    for tp in range(7):
        for s in range(2):
            TR(WO + 8 * tp + 4 * s, 72 + tp, (32 * s) * 896)
            TR(WO + 8 * tp + 4 * s + 2, 72 + tp, (32 * s + 16) * 896)
    wait_all(W_CTX, extra=[f'ds_read_b128 v[{32+4*t}:{32+4*t+3}], v90 offset:{t*128}' for t in range(4)])
    sentinel_put(WS_SN5, wave=2)
    a('s_waitcnt lgkmcnt(0)')
    allred_row(list(range(32, 48)), 'v_add_f32', shifts=(2, 4))
    for i in range(8): a(f'v_cvt_pk_bf16_f32 v{48+i}, v{32+2*i}, v{32+2*i+1}')
    D5 = 160
    for s in range(2):
        for tp in range(7):
            MF(D5 + 4 * tp, WO + 8 * tp + 4 * s, 48 + 4 * s, None if s == 0 else D5 + 4 * tp)
    for tp in range(7):
        setexec(M_C01 << (2 * tp))
        for i in range(4): a(f'v_bfi_b32 v{56+i}, s{sMASK}, v{vTAG}, v{D5+4*tp+i}')
    setexec(-1)
    for x in tperm(60, 56): a(x)
    a('s_waitcnt lgkmcnt(0)')
    setexec((1 << 56) - 1)
    a('global_store_dwordx4 v91, v[60:63], s[28:29] sc1')
    stamp(9)
    dump_stamps(10)
    a('s_endpgm')
    a.label('L_h3r')
    budget()
    for T in range(4):
        a(f's_add_u32 m0, s{sT3}, {T * 4096}')
        goff = (T >> 1) * (1 << 20) + (T & 1) * 4096
        a(f'v_add_u32 v70, {goff}, v80'); a(f'v_add_u32 v71, {goff}, v81')
        for i in range(4):
            a(f'global_load_lds_dwordx4 v{70 + (i & 1)}, s[28:29] offset:{i*1024} sc1')
    a('v_mov_b32 v68, 0')
    a('s_branch L_nowt')

    a.label('L_loader2b')
    for r in range(8):
        a(f'v_xor_b32 v8, {r << 5}, v{vL16}')
        a(f'v_add_u32 v{vA[r]}, {r * 2048}, v8')
    srd(6, 16777216)
    a(f's_lshl_b32 s{sOFF}, s{sX8}, 21')
    a(f's_lshr_b32 s{sT0}, s{sI}, 1')
    a(f's_lshl_b32 s{sT0}, s{sT0}, 18')
    a(f's_add_u32 s{sOFF}, s{sOFF}, s{sT0}')
    a(f's_and_b32 s{sT0}, s{sI}, 1')
    a(f's_lshl_b32 s{sT0}, s{sT0}, 10')
    a(f's_add_u32 s{sOFF}, s{sOFF}, s{sT0}')
    a(f's_mov_b32 m0, {L2_CKV}')
    nslow, nsig = (0 if o['hold'] else o['nslow']), o['nsig']
    assert nslow % 8 == 0 and nsig % 8 == 0 and nslow <= nsig <= 128
    cur = 28
    def run8(n, th):
        L = a.newlabel('L_ld')
        a(f's_mov_b32 s{sCNT}, {n // 8}')
        a.label(L)
        for half in range(2):
            for k in range(4):
                a(f'buffer_load_dwordx4 v{vA[4*half+k]}, s[{SRD}:{SRD+3}], s{sOFF} offen{NT} lds')
                a('s_add_u32 m0, m0, 1024')
            a(f'v_add_u32 v{vCNT}, 4, v{vCNT}')
            if half: a(f's_add_u32 s{sOFF}, s{sOFF}, {8*2048}')
            a(f'v_max_i32 v{vPUB}, v{vPUB}, v{vCNT}')
            a(f's_waitcnt vmcnt({th})')
            a(f'ds_write_b32 v{vFL}, v{vPUB}')
        a(f's_sub_u32 s{sCNT}, s{sCNT}, 1')
        a(f's_cmp_lg_u32 s{sCNT}, 0')
        a(f's_cbranch_scc1 {L}')
    if o['hold']:
        drain(28, 0)
        if o['hold'] > 1: wait_all(A_P1)
        cur = 0
    elif nslow:
        drain(28, tha)
        run8(nslow, tha)
        cur = tha
    if thb >= cur: a(f'v_subrev_u32 v{vCNT}, {thb - cur}, v{vCNT}')
    else: drain(cur, thb)
    stamp(2)
    if nsig > nslow: run8(nsig - nslow, thb)
    a('s_waitcnt lgkmcnt(0)')
    a(f's_add_u32 s{sTAG32}, s{sEP}, 1')
    sentinel_put(WS_SNC)
    stamp(3)
    if nsig < 128: run8(128 - nsig, thb)
    stamp(4)
    drain(thb, 0, 4)
    stamp(5)
    a(f's_cmp_lt_u32 s{sU}, 56')
    a('s_cbranch_scc0 L_ld2_done')
    pat896()
    srd(22, 1605632)
    a(f's_mul_i32 s{sOFF}, s{sU}, {32*896}')
    a(f's_mov_b32 m0, {L2_CKV}')
    wait_all(A_H25, slp=1)
    a(f'v_subrev_u32 v{vCNT}, 28, v{vCNT}')
    run(vE, 28, 7168, 28)
    drain(28, 0, 28)
    a.label('L_ld2_done')
    stamp(6)
    dump_stamps(7)
    a('s_endpgm')

    a.label('L_loader1b')
    drain(th1, 0, 4)
    stamp(2)
    th2 = o['th2']
    pat896()
    a(f'v_and_b32 v8, 15, v{vLANE}')
    a(f'v_lshlrev_b32 v9, 1, v{vG}')
    a('v_xor_b32 v8, v8, v9')
    a('v_lshlrev_b32 v8, 4, v8')
    a(f'v_mul_u32_u24 v9, 3584, v{vG}')
    a(f'v_add_u32 v{vD0}, v8, v9')
    a('v_xor_b32 v8, 128, v8')
    a(f'v_add_u32 v{vD1}, v8, v9')
    a(f'v_add_u32 v{vD1}, {4*3584}, v{vD1}')
    a('s_waitcnt lgkmcnt(0)')
    a(f's_add_u32 s{sTAG32}, s{sEP}, 1')
    sexp(sT0, [(sX8, BLK), (sI, 128)], WS_SNC)
    a(f'v_mov_b32 v37, s{sT0}')
    wait_all(W_FREE, slp=1)
    sentinel_poll(37, 1)
    stamp(3)
    a(f'v_subrev_u32 v{vCNT}, {th2}, v{vCNT}')
    a(f's_cmp_lt_u32 s{sGI}, 98')
    a('s_cbranch_scc0 L_ld_nogu')
    a(f's_mul_i32 s{sT0}, s{sGI}, 9363')
    a(f's_lshr_b32 s{sT0}, s{sT0}, 16')
    for q in range(98): assert (q * 9363) >> 16 == q // 7
    a(f's_mul_i32 s{sT3}, s{sT0}, 7')
    a(f's_sub_u32 s{sT3}, s{sGI}, s{sT3}')
    a(f's_mul_i32 s{sT3}, s{sT3}, {64*3584}')
    a(f's_lshl_b32 s{sT0}, s{sT0}, 8')
    a(f's_add_u32 s{sT3}, s{sT3}, s{sT0}')
    a(f's_mov_b32 m0, {L1_GU}')
    a(f's_mov_b32 s{sOFF}, s{sT3}')
    srd(18, 1605632)
    run([vD0, vD1], 16, 8 * 3584, th2, unroll=2)
    a(f's_mov_b32 s{sOFF}, s{sT3}')
    srd(20, 1605632)
    run([vD0, vD1], 16, 8 * 3584, th2, unroll=2)
    a.label('L_ld_nogu')
    srd(12, 8388608)
    a(f's_lshl_b32 s{sOFF}, s{sMH}, 22')
    a(f's_add_u32 s{sOFF}, s{sOFF}, s{sT2}')
    a(f's_mov_b32 m0, {L1_WUK}')
    run([vC], 64, 8 * 8192, th2, unroll=4)
    srd(14, 3670016)
    a(f's_lshl_b32 s{sT0}, s{sH}, 2')
    a(f's_add_u32 s{sT0}, s{sT0}, s{sDQ}')
    a(f's_mul_i32 s{sOFF}, s{sT0}, {64*896}')
    a(f's_mov_b32 m0, {L1_WO}')
    n1r = (o['n1'] // 7) * 7
    if n1r: run(vE, n1r, 7168, th2)
    stamp(4)
    if n1r < 56:
        drain(th2, 0, 4)
        wait_all(W_H3)
        a(f'v_subrev_u32 v{vCNT}, {th2}, v{vCNT}')
        run(vE, 56 - n1r, 7168, th2)
    stamp(5)
    drain(th2, 0, 4)
    stamp(6)
    dump_stamps(7)
    a('s_endpgm')

    a.label('L_aux1')
    a(f's_cmp_lt_u32 s{sGI}, 98')
    a('s_cbranch_scc0 L_end')
    a(f's_mul_i32 s{sT2}, s{sGI}, 9363')
    a(f's_lshr_b32 s{sT2}, s{sT2}, 16')
    a(f's_mul_i32 s{sT3}, s{sT2}, 7')
    a(f's_sub_u32 s{sT3}, s{sGI}, s{sT3}')
    a(f's_lshl_b32 s{sT0}, s{sT3}, 7')
    a(f'v_add_u32 v{vB1}, s{sT0}, v{vB1}')
    for s in range(2):
        a(f'ds_read2_b64 v[{32+4*s}:{32+4*s+3}], v{vB1} offset0:{8*s} offset1:{8*s+4}')
    a(f'v_and_b32 v8, 7, v{vROW}')
    a(f'v_lshl_add_u32 v9, v{vROW}, 8, v{vC4}')
    a(f'v_add_u32 v9, {L1_GU}, v9')
    for t in range(8):
        a(f'v_xor_b32 v10, {t}, v8')
        a(f'v_lshl_add_u32 v{84+t}, v10, 5, v9')
    a(f'v_bfe_u32 v9, v{vLANE}, 2, 1')
    a('v_lshlrev_b32 v40, 9, v9')
    a(f'v_lshrrev_b32 v9, 3, v{vLANE}')
    a('v_lshl_add_u32 v40, v9, 6, v40')
    a(f'v_lshl_add_u32 v40, v{vC4}, 1, v40')
    sexp(sT0, [(sT3, BLK), (sT2, 2048)], WS_GU)
    a(f'v_add_u32 v40, s{sT0}, v40')
    wait_prog(96, slp=4)
    stamp(3)
    for mat in range(2):
        for t in range(8):
            for s in range(2):
                r = 96 + 8 * t + 4 * s
                TR(r, 84 + t, mat * 16384 + (32 * s) * 256)
                TR(r + 2, 84 + t, mat * 16384 + (32 * s + 16) * 256)
        a('s_waitcnt lgkmcnt(0)')
        for s in range(2):
            for t in range(8):
                MF(160 + 4 * t, 96 + 8 * t + 4 * s, 32 + 4 * s, None if s == 0 else 160 + 4 * t)
        for t in range(8):
            setexec(M_C01 << (2 * t))
            for i in range(4): a(f'v_bfi_b32 v{56+4*mat+i}, s{sMASK}, v{vTAG}, v{160+4*t+i}')
        setexec(-1)
        for x in tperm(64 + 4 * mat, 56 + 4 * mat): a(x)
        a('s_waitcnt lgkmcnt(0)')
        a(f'global_store_dwordx4 v40, v[{64+4*mat}:{67+4*mat}], s[28:29] offset:{1024*mat} sc1')
    stamp(4)
    dump_stamps(5)
    a('s_endpgm')

    a.label('L_aux2')
    lane_consts()
    def gather4(lab, addrs):
        a(f's_branch {lab}_first')
        a.label(lab)
        a('s_sleep 4')
        a.label(lab + '_first')
        budget()
        for i in range(4): a(f'v_mov_b32 v{44+i}, v{vTAG}')
        for i in range(4):
            if i == 3: setexec(0xffffffff)
            a(f'global_load_dwordx4 v[{32+4*i}:{32+4*i+3}], v{addrs[i][0]}, s[28:29] offset:{addrs[i][1]} sc1')
        setexec(-1)
        a('s_waitcnt vmcnt(0)')
        untag(range(32, 48), 48)
        a(f's_cbranch_vccnz {lab}')
        for i in range(4):
            a(f'v_add_f32 v{32+i}, v{32+i}, v{36+i}')
            a(f'v_add_f32 v{40+i}, v{40+i}, v{44+i}')
        for i in range(4): a(f'v_add_f32 v{32+i}, v{32+i}, v{40+i}')
    a(f's_cmp_lt_u32 s{sU}, 56')
    a('s_cbranch_scc1 L_down')
    a(f's_sub_u32 s{sT2}, s{sU}, 64')
    a(f's_cmp_lt_u32 s{sT2}, 56')
    a('s_cbranch_scc0 L_end')
    a('s_waitcnt lgkmcnt(0)')
    tags()
    a(f's_lshl_b32 s{sT0}, s{sT2}, 5')
    a(f'v_lshlrev_b32 v92, 1, v{vL15}')
    a(f'v_add_u32 v92, s{sT0}, v92')
    a('global_load_ushort v94, v92, s[4:5]')
    sexp(sT0, [(sX8, BLK), (sI, 3584)], WS_FP - 8 * 3584)
    a(f'v_add_u32 v80, s{sT0}, v{vL16}')
    a(f'v_and_b32 v83, 7, v{vLANE}')
    a('v_lshlrev_b32 v83, 18, v83')
    a(f'v_lshrrev_b32 v9, 3, v{vLANE}')
    a('v_lshl_add_u32 v83, v9, 7, v83')
    a(f'v_add_u32 v83, {WS_SN2 + 64}, v83')
    wait_all(A_O, slp=4)
    sentinel_poll(83, (1 << 56) - 1)
    stamp(1)
    gather4('L_hf2', [(80, 1024 * i) for i in range(4)])
    stamp(2)
    allred_row([32, 33, 34, 35], 'v_add_f32', shifts=(4, 8))
    allred_swap([32, 33, 34, 35], [36, 37, 38, 39], 'v_add_f32', 16)
    allred_swap([32, 33, 34, 35], [36, 37, 38, 39], 'v_add_f32', 32)
    a(f'v_add_u32 v81, {L2_FIN + 256}, v{vL16}')
    setexec(15)
    a('ds_write_b128 v81, v[32:35]')
    setexec(-1)
    a(f'v_lshlrev_b32 v82, 2, v{vL15}')
    a(f'v_add_u32 v82, {L2_FIN}, v82')
    a('ds_read_b32 v40, v82 offset:256')
    a('s_waitcnt lgkmcnt(0)')
    bf16r(40, 40)
    a(f'v_mul_f32 v41, {f32(-LOG2E)}, v40')
    a('v_exp_f32 v41, v41')
    a('v_add_f32 v41, 1.0, v41')
    a('v_rcp_f32 v41, v41')
    a('v_mul_f32 v40, v40, v41')
    bf16r(40, 40)
    a('v_lshlrev_b32 v94, 16, v94')
    stamp(3)
    wait_all(A_FIN, extra=[f'ds_read_b32 v{32+i}, v82 offset:{64*i}' for i in range(4)])
    a('s_waitcnt lgkmcnt(0)')
    a('v_add_f32 v32, v32, v33')
    a('v_add_f32 v34, v34, v35')
    a('v_add_f32 v32, v32, v34')
    bf16r(32, 32)
    a('v_mul_f32 v32, v32, v40')
    bf16r(32, 32)
    a('v_add_f32 v32, v32, v94')
    a('v_cvt_pk_bf16_f32 v32, v32, v32')
    setexec(0xffff)
    a('global_store_short v92, v32, s[24:25]')
    a(f's_cmp_lg_u32 s{sU}, 64')
    a('s_cbranch_scc1 L_fdone')
    a(f'v_mov_b32 v33, s{sTAG32}')
    a('v_mov_b32 v34, 0')
    setexec(1)
    a('global_store_dword v34, v33, s[28:29] sc1')
    a.label('L_fdone')
    stamp(4)
    dump_stamps(5)
    a('s_endpgm')
    a.label('L_down')
    a('s_waitcnt lgkmcnt(0)')
    tags()
    a(f's_lshr_b32 s{sT0}, s{sU}, 2')
    a(f's_lshl_b32 s{sT0}, s{sT0}, 11')
    a(f's_and_b32 s{sT1}, s{sU}, 3')
    a(f's_lshl_b32 s{sT1}, s{sT1}, 7')
    a(f's_add_u32 s{sT0}, s{sT0}, s{sT1}')
    a(f's_add_u32 s{sT0}, s{sT0}, {WS_GU}')
    a(f'v_lshrrev_b32 v9, 5, v{vLANE}')
    a('v_lshlrev_b32 v80, 20, v9')
    a(f'v_bfe_u32 v9, v{vLANE}, 3, 2')
    a('v_lshl_add_u32 v80, v9, 9, v80')
    a(f'v_and_b32 v9, 7, v{vLANE}')
    a('v_lshl_add_u32 v80, v9, 4, v80')
    a(f'v_add_u32 v76, s{sT0}, v80')
    for i in range(1, 4): a(f'v_add_u32 v{76+i}, {BLK*i}, v76')
    a(f'v_mul_u32_u24 v9, 896, v{vROW}')
    a(f'v_add_u32 v9, v9, v{vC4}')
    for t in range(4):
        a(f'v_xor_b32 v10, {t}, v{vSWZ}')
        a(f'v_lshl_add_u32 v{84+t}, v10, 5, v9')
    a(f'v_bfe_u32 v9, v{vLANE}, 2, 1')
    a('v_mul_u32_u24 v91, 28, v9')
    a(f'v_lshrrev_b32 v9, 3, v{vLANE}')
    a('v_add_u32 v91, v91, v9')
    sexp(sT0, [(sU, 64)], WS_FP)
    for i in range(4):
        a(f'v_add_u32 v9, {7*i}, v91')
        a('v_and_b32 v10, 7, v9')
        a('v_lshlrev_b32 v10, 18, v10')
        a('v_lshrrev_b32 v9, 3, v9')
        a('v_mul_u32_u24 v9, 3584, v9')
        a(f'v_add3_u32 v9, v9, v10, s{sT0}')
        a(f'v_lshl_add_u32 v{72+i}, v{vC4}, 1, v9')
    a(f'v_lshlrev_b32 v81, 3, v{vL15}')
    a(f'v_add_u32 v81, {L2_H}, v81')
    a(f'v_lshlrev_b32 v82, 6, v{vL1}')
    a(f'v_lshl_add_u32 v82, v{vG}, 3, v82')
    a(f'v_add_u32 v82, {L2_H}, v82')
    wait_prog(184, slp=4)
    stamp(1)
    for tl in range(28):
        TR(96 + 4 * tl, 84 + (tl & 3), (tl >> 2) * 128)
        TR(96 + 4 * tl + 2, 84 + (tl & 3), (tl >> 2) * 128 + 16 * 896)
    wait_all(A_O, slp=1)
    gather4('L_hf1', [(76 + i, 0) for i in range(4)])
    stamp(2)
    allred_swap([32, 33, 34, 35], [36, 37, 38, 39], 'v_add_f32', 32)
    for i in range(4): a(f'v_mov_b32 v{36+i}, v{32+i}')
    for i in range(4): a(f'v_permlane16_swap_b32 v{32+i}, v{36+i}')
    for i in range(8): bf16r(32 + i, 32 + i)
    k0 = 0.7978845608028654; k1 = 0.044715
    a(f's_mov_b32 s{sT0}, {f32(k1)}')
    for i in range(4):
        a(f'v_mul_f32 v{40+i}, v{32+i}, v{32+i}')
        a(f'v_fma_f32 v{40+i}, v{40+i}, s{sT0}, 1.0')
        a(f'v_mul_f32 v{40+i}, v{40+i}, v{32+i}')
        a(f'v_mul_f32 v{40+i}, {f32(-2*k0*LOG2E)}, v{40+i}')
        a(f'v_exp_f32 v{40+i}, v{40+i}')
    for i in range(4):
        a(f'v_add_f32 v{40+i}, 1.0, v{40+i}')
        a(f'v_rcp_f32 v{40+i}, v{40+i}')
    for i in range(4):
        a(f'v_mul_f32 v{40+i}, v{40+i}, v{32+i}')
        bf16r(40 + i, 40 + i)
        a(f'v_mul_f32 v{40+i}, v{40+i}, v{36+i}')
    a('v_cvt_pk_bf16_f32 v40, v40, v41')
    a('v_cvt_pk_bf16_f32 v41, v42, v43')
    a('ds_write_b64 v81, v[40:41]')
    a('ds_read2_b64 v[32:35], v82 offset0:0 offset1:4')
    a('s_waitcnt lgkmcnt(0)')
    for i in range(4):
        for tp in range(7):
            MF(208 + 4 * tp, 96 + 4 * (7 * i + tp), 32, None)
        oo = 56 + 4 * (i & 1)
        for tp in range(7):
            setexec(M_C01 << (2 * tp))
            for k in range(4): a(f'v_bfi_b32 v{oo+k}, s{sMASK}, v{vTAG}, v{208+4*tp+k}')
        setexec(-1)
        for x in tperm(oo + 8, oo): a(x)
        a('s_waitcnt lgkmcnt(0)')
        setexec((1 << 56) - 1)
        a(f'global_store_dwordx4 v{72+i}, v[{oo+8}:{oo+11}], s[28:29] sc1')
        setexec(-1)
    sentinel_put(WS_SN2 + 64)
    stamp(3)
    stamp(4)
    dump_stamps(5)
    a.label('L_end')
    a('s_endpgm')
    a.label('L_codeend')
    a.hazard_pass()
    hdr = open('recurrent_scan__compressed_kv_cla__geglu_ffn__decode.s.ref').read().split('; Override')[0]
    return hdr + f"""; @launch grid=(256,1,1) block=(384,1,1) lds={LDS_BYTES}
.amdgcn_target "amdgcn-amd-amdhsa--gfx950"
.text
.globl {KN}
.p2align 8
.type {KN},@function
{KN}:
{a.text()}.section .rodata,"a"
.p2align 6
.amdhsa_kernel {KN}
  .amdhsa_next_free_vgpr 256
  .amdhsa_next_free_sgpr 102
  .amdhsa_accum_offset 256
  .amdhsa_group_segment_fixed_size 0
  .amdhsa_kernarg_size 104
  .amdhsa_user_sgpr_count 2
  .amdhsa_user_sgpr_kernarg_segment_ptr 1
  .amdhsa_system_sgpr_workgroup_id_x 1
.end_amdhsa_kernel
"""

if __name__ == '__main__':
    out = sys.argv[1]
    kw = {}
    for t in sys.argv[2:]:
        k, v = t.split('=')
        kw[k] = int(v)
    open(out, 'w').write(gen(**kw))
```

```python
import sys, math, struct
from asmgen import Asm

KN = 'recurrent_scan__compressed_kv_cla__geglu_ffn__decode_kernel'
NW = 5
BLK = 0x40000
WS_Q1 = 0x1000
WS_QA = WS_Q1 + 0x8000
WS_ST = WS_QA + 0x4000
WS_SN2 = WS_ST + 0x1000
WS_XID = WS_SN2 + 0x800
WS_SN3 = WS_XID + 0x800
WS_XI1 = WS_SN3 + 0x800
WS_SNC = WS_XI1 + 0x800
WS_GU = WS_SNC + 0x800
WS_FP = WS_GU + 7 * 4096
WS_SP = WS_FP + 8 * 4096
WS_CX = WS_SP + 8 * 8192
assert WS_CX + 0x8000 <= BLK
Q1L = 0x200000 + 0x20000 - WS_Q1
WS_SX = 0x200000
WS_OW = 0x400000
WS_TS = 0x600000
L2_CKV = 0
L2_QF = 131072
L2_P = L2_QF + 16384
L2_MW = L2_P + 4096
L2_MX = L2_MW + 1024
L1_WUK = 0
L1_WO = 65536
L1_GU = 94208
L1_OB = L1_GU
L1_OC = L1_OB + 16384
L1_Q = L1_GU + 57344
L1_WT = L1_Q + 1024
L1_FIN = L1_WT + 128
L_XN = 159744
L_FL = L_XN + 1792
LDS_BYTES = 163840
assert L1_FIN + 512 <= L_XN and L_FL + 64 <= LDS_BYTES and L_FL % 16 == 0

LOG2E = 1.4426950408889634
def f32(x): return '0x%08x' % struct.unpack('<I', struct.pack('<f', x))[0]
A_QA, A_P, A_O = range(1, 4)
W_Q, W_FREE, W_S3, W_H3, W_WT, W_OC, W_H4, W_FIN = range(1, 9)

DEF = dict(dbg=0, nt=1, local=1, tha=4, thb=40, nslow=16, nsig=80, h2at=112, h1at=96, th1=40, th2=40,
           sn3at=2, sn5=0, wo2=1, wdtrig=3)

def gen(**kw):
    o = dict(DEF); o.update(kw)
    dbg = o['dbg']
    a = Asm()
    NT = ' nt' if o['nt'] else ''
    sWAVE, sX8, sI, sH, sB3, sKC, sCH, sDQ, sMH, sTAG, sMASK = 3, 30, 31, 32, 33, 34, 35, 36, 37, 38, 39
    SRD = 40
    sOFF, sCNT, sU, sGI, sW, sF, sBUD, sT0, sT1, sT2, sT3, sEP = 44, 45, 46, 47, 48, 49, 50, 51, 52, 53, 54, 55
    sTAG32, sSC, sTS, sHL, sLOC = 58, 59, 60, 100, 101
    vLANE, vL15, vG, vTAG, vSTG, vFL, vL16, vT = 1, 2, 3, 4, 5, 6, 7, 8
    vFL4 = 14
    vROW, vC4 = 26, 27

    def stamp(k):
        if dbg: a(f's_memrealtime s[{sTS+2*k}:{sTS+2*k+1}]')
    def dump_stamps(n):
        if not dbg: return
        a('s_waitcnt lgkmcnt(0)')
        a('s_mov_b64 exec, 1')
        a(f's_mul_i32 s{sT0}, s2, 6')
        a(f's_add_u32 s{sT0}, s{sT0}, s{sWAVE}')
        a(f's_lshl_b32 s{sT0}, s{sT0}, 7')
        a(f's_add_u32 s{sT0}, s{sT0}, {WS_TS}')
        a(f'v_mov_b32 v8, s{sT0}')
        for k in range(n):
            a(f'v_mov_b32 v9, s{sTS+2*k}')
            a(f'global_store_dword v8, v9, s[28:29] offset:{4*k}')
    def setexec(mask):
        if mask == -1: a('s_mov_b64 exec, -1')
        elif 0 <= mask <= 64: a(f's_mov_b64 exec, {mask}')
        elif mask < (1 << 31): a(f's_mov_b64 exec, 0x{mask:x}')
        else:
            a(f's_mov_b32 exec_lo, 0x{mask & 0xffffffff:x}')
            a(f's_mov_b32 exec_hi, 0x{mask >> 32:x}')
    def loop_head(base, slp=0):
        L = a.newlabel(base)
        a(f's_branch {L}_f')
        a.label(L)
        a(f's_sub_u32 s{sBUD}, s{sBUD}, 1')
        a('s_cbranch_scc1 L_end')
        if slp: a(f's_sleep {slp}')
        a.label(L + '_f')
        return L
    tails = []
    def loop_head2(base, slp=0):
        L = a.newlabel(base)
        a.label(L + '_f')
        tails.append((L, slp))
        return L
    def flush_tails():
        for L, slp in tails:
            a.label(L)
            a(f's_sub_u32 s{sBUD}, s{sBUD}, 1')
            a('s_cbranch_scc1 L_end')
            if slp: a(f's_sleep {slp}')
            a(f's_branch {L}_f')
        tails.clear()
    def sexp(dst, terms, const=0):
        first = True
        for reg, f in terms:
            tgt = dst if first else sT1
            if f & (f - 1) == 0: a(f's_lshl_b32 s{tgt}, s{reg}, {int(math.log2(f))}')
            else: a(f's_mul_i32 s{tgt}, s{reg}, {f}')
            if not first: a(f's_add_u32 s{dst}, s{dst}, s{sT1}')
            first = False
        if const: a(f's_add_u32 s{dst}, s{dst}, {const}')
    def wait_flag(addr, off, thr, extra=None, slp=0):
        L = a.newlabel('L_wf')
        a.label(L)
        a(f'ds_read_b32 v{vT}, v{addr} offset:{off}')
        n = 0
        if extra:
            for e in extra: a(e)
            n = len(extra)
        a(f's_sub_u32 s{sBUD}, s{sBUD}, 1')
        a('s_cbranch_scc1 L_end')
        if slp: a(f's_sleep {slp}')
        a(f's_waitcnt lgkmcnt({min(n, 15)})')
        a(f'v_cmp_gt_i32 vcc, {thr}, v{vT}')
        a(f's_cbranch_vccnz {L}')
    def wait_prog(thr, slp=0): wait_flag(vFL, 0, thr, None, slp)
    def wait_all(k, extra=None, slp=0): wait_flag(vFL4, 0, k, extra, slp)
    def wait_w0(k, extra=None): wait_flag(vFL, 16, k, extra)
    def stage(k):
        a(f'v_mov_b32 v{vT+4}, {k}')
        a(f'ds_write_b32 v{vSTG}, v{vT+4}')
    def untag(regs, acc):
        for r in regs: a(f'v_xor_b32 v{r}, v{r}, v{vTAG}')
        rs = list(regs)
        a(f'v_or3_b32 v{acc}, v{rs[0]}, v{rs[1]}, v{rs[2]}')
        i = 3
        while i < len(rs):
            if i + 1 < len(rs):
                a(f'v_or3_b32 v{acc}, v{acc}, v{rs[i]}, v{rs[i+1]}'); i += 2
            else:
                a(f'v_or_b32 v{acc}, v{acc}, v{rs[i]}'); i += 1
        a(f'v_and_b32 v{acc}, s{sMASK}, v{acc}')
        a(f'v_cmp_ne_u32 vcc, 0, v{acc}')
    def sentinel_poll(vaddr, mask):
        setexec(mask)
        L = a.newlabel('L_sn')
        a.label(L)
        a(f'global_load_dword v{vT+5}, v{vaddr}, s[28:29] sc1')
        a(f's_sub_u32 s{sBUD}, s{sBUD}, 1')
        a('s_cbranch_scc1 L_end')
        a('s_waitcnt vmcnt(0)')
        a(f'v_cmp_ne_u32 vcc, s{sTAG32}, v{vT+5}')
        a(f's_cbranch_vccnz {L}')
        setexec(-1)
    def sentinel_addr(reg, base):
        sexp(sT0, [(sX8, BLK), (sI, 128)], base)
        a(f'v_add_u32 v{reg}, s{sT0}, v{vL16}')
    def sentinel_put(reg, wave=None):
        L = None
        if wave is not None:
            L = a.newlabel('L_np')
            a(f's_cmp_lg_u32 s{sW}, {wave}')
            a(f's_cbranch_scc1 {L}')
        a(f'v_mov_b32 v{vT}, s{sTAG32}')
        setexec(15)
        a(f'global_store_dwordx4 v{reg}, v[{vT}:{vT+3}], s[28:29] sc1')
        setexec(-1)
        if L: a.label(L)
    def store_flavoured(stores, tag):
        a(f's_cmp_lg_u32 s{sLOC}, 0')
        a(f's_cbranch_scc1 L_{tag}l')
        for x in stores: a(x + ' sc1')
        a(f's_branch L_{tag}d')
        a.label(f'L_{tag}l')
        for x in stores: a(x)
        a.label(f'L_{tag}d')
    def bf16r(dst, src):
        a(f'v_cvt_pk_bf16_f32 v{dst}, v{src}, v{src}')
        a(f'v_and_b32 v{dst}, 0xffff0000, v{dst}')
    def allred_row(regs, op, shifts=(8, 4, 2, 1)):
        for sh in shifts:
            for r in regs:
                a(f'{op}_dpp v{r}, v{r}, v{r} row_ror:{sh} row_mask:0xf bank_mask:0xf')
    def allred_swap(regs, tmps, op, which):
        for r, t in zip(regs, tmps): a(f'v_mov_b32 v{t}, v{r}')
        for r, t in zip(regs, tmps): a(f'v_permlane{which}_swap_b32 v{r}, v{t}')
        for r, t in zip(regs, tmps): a(f'{op} v{r}, v{r}, v{t}')
    def mfs(d, x, y, c):
        cc = '0' if c is None else f'v[{c}:{c+3}]'
        return f'v_mfma_f32_16x16x32_bf16 v[{d}:{d+3}], v[{x}:{x+3}], v[{y}:{y+3}], {cc}'
    def MF(d, x, y, c): a(mfs(d, x, y, c))
    def trs(r, addr, off): return f'ds_read_b64_tr_b16 v[{r}:{r+1}], v{addr} offset:{off}'
    def TR(r, addr, off): a(trs(r, addr, off))
    def lane_consts():
        a(f'v_and_b32 v{vL15}, 15, v{vLANE}')
        a(f'v_lshrrev_b32 v{vROW}, 2, v{vLANE}')
        a(f'v_and_b32 v{vC4}, 3, v{vLANE}')
        a(f'v_lshlrev_b32 v{vC4}, 3, v{vC4}')
        a(f's_mov_b32 s{sMASK}, 0xfff')
    def tags():
        a(f's_add_u32 s{sTAG32}, s{sEP}, 1')
        a(f's_and_b32 s{sTAG}, s{sTAG32}, 0xfff')
        a(f'v_mov_b32 v{vTAG}, s{sTAG}')
    def tag8(dst):
        a(f's_lshr_b32 s{dst}, s{sTAG32}, 4')
        a(f's_and_b32 s{dst}, s{dst}, 3')
        a(f's_lshl_b32 s{dst}, s{dst}, 6')
        a(f's_not_b32 s{sT1}, s{sTAG32}')
        a(f's_and_b32 s{sT1}, s{sT1}, 3')
        a(f's_lshl_b32 s{sT1}, s{sT1}, 4')
        a(f's_or_b32 s{dst}, s{dst}, s{sT1}')
        a(f's_and_b32 s{sT1}, s{sTAG32}, 15')
        a(f's_or_b32 s{dst}, s{dst}, s{sT1}')

    M_LN = 0x0fffffff0fffffff
    X = 16
    stamp(0)
    a('s_load_dwordx16 s[4:19], s[0:1], 0')
    a('s_load_dwordx8 s[20:27], s[0:1], 64')
    a('s_load_dwordx2 s[28:29], s[0:1], 96')
    a('s_cmp_ge_u32 s2, 256')
    a('s_cbranch_scc1 L_end')
    a('s_getpc_b64 s[56:57]')
    a.label('L_pc')
    a('v_lshrrev_b32 v8, 6, v0')
    a(f's_lshr_b32 s{sI}, s2, 3')
    a(f's_mul_i32 s{sT0}, s{sI}, {128*NW}')
    a(f'v_lshl_add_u32 v9, v8, 7, s{sT0}')
    a('v_min_u32 v9, L_codeend-L_pc-4, v9')
    a('global_load_dword v250, v9, s[56:57]')
    a(f'v_and_b32 v{vLANE}, 63, v0')
    a(f'v_readfirstlane_b32 s{sWAVE}, v8')
    a(f's_and_b32 s{sX8}, s2, 7')
    a(f's_and_b32 s{sI}, s{sI}, 15')
    a(f's_and_b32 s{sU}, s2, 127')
    a(f's_lshr_b32 s{sT0}, s{sI}, 3')
    a(f's_lshl_b32 s{sH}, s{sX8}, 1')
    a(f's_add_u32 s{sH}, s{sH}, s{sT0}')
    a(f's_and_b32 s{sDQ}, s{sI}, 3')
    a(f's_bfe_u32 s{sMH}, s{sI}, 0x10002')
    a(f's_mov_b32 s{sBUD}, 0x40000')
    a(f'v_lshrrev_b32 v{vG}, 4, v{vLANE}')
    a(f'v_mov_b32 v{vFL}, {L_FL}')
    a(f'v_lshlrev_b32 v{vL16}, 4, v{vLANE}')
    a(f'v_and_b32 v{vFL4}, 3, v{vLANE}')
    a(f'v_lshlrev_b32 v{vFL4}, 2, v{vFL4}')
    a(f'v_add_u32 v{vFL4}, {L_FL + 16}, v{vFL4}')
    a(f's_cmp_eq_u32 s{sWAVE}, 0')
    a('s_cbranch_scc1 L_loader')
    a(f's_sub_u32 s{sW}, s{sWAVE}, 1')
    a(f's_lshl_b32 s{sT0}, s{sW}, 2')
    a(f's_add_u32 s{sT0}, s{sT0}, {L_FL + 16}')
    a(f'v_mov_b32 v{vSTG}, s{sT0}')
    a('v_mov_b32 v8, 0')
    a(f'ds_write_b32 v{vSTG}, v8')
    a(f'v_lshrrev_b32 v9, 5, v{vLANE}')
    a('v_mul_u32_u24 v9, 896, v9')
    a(f'v_and_b32 v10, 31, v{vLANE}')
    a('v_lshl_add_u32 v10, v10, 5, v9')
    a(f's_and_b32 s{sHL}, s{sH}, 7')
    a(f's_lshr_b32 s{sB3}, s{sX8}, 2')
    a('s_cmp_ge_u32 s2, 128')
    a('s_waitcnt lgkmcnt(0)')
    a(f's_load_dword s{sEP}, s[28:29], 0')
    a('s_cbranch_scc0 L_g2bar')
    a('global_load_ushort v24, v9, s[4:5]')
    setexec(M_LN)
    a(f'global_load_dwordx4 v[{X}:{X+3}], v10, s[4:5]')
    a(f'global_load_dwordx4 v[{X+4}:{X+7}], v10, s[4:5] offset:16')
    setexec(-1)
    a('s_barrier')
    a('s_branch L_comp1')
    a.label('L_g2bar')
    a('s_barrier')
    a('s_branch L_comp2')

    a.label('L_loader')
    a('s_setprio 3')
    vC, vCNT, vPUB = 16, 18, 19
    vA = list(range(20, 28))
    a(f'v_mov_b32 v{vPUB}, 0')
    a(f'ds_write_b32 v{vFL}, v{vPUB}')
    a(f's_mov_b32 s{SRD+3}, 0x20000')
    a('s_cmp_lt_u32 s2, 128')
    a('s_cbranch_scc1 L_loader2')
    def LD(v, off=0):
        a(f'buffer_load_dwordx4 v{v}, s[{SRD}:{SRD+3}], s{sOFF} offen' + (f' offset:{off}' if off else '') + f'{NT} lds')
    def prog(g, th):
        a(f'v_add_u32 v{vCNT}, {g}, v{vCNT}')
        a(f'v_max_i32 v{vPUB}, v{vPUB}, v{vCNT}')
        a(f's_waitcnt vmcnt({th})')
        a(f'ds_write_b32 v{vFL}, v{vPUB}')
    def run(seq, n, th, grp=4):
        assert n % len(seq) == 0 and len(seq) % grp == 0
        L = a.newlabel('L_ld')
        if n > len(seq):
            a(f's_mov_b32 s{sCNT}, {n // len(seq)}')
            a.label(L)
        for k, (v, st) in enumerate(seq):
            LD(v)
            a('s_add_u32 m0, m0, 1024')
            if st: a(f's_add_u32 s{sOFF}, s{sOFF}, {st}')
            if k % grp == grp - 1: prog(grp, th)
        if n > len(seq):
            a(f's_sub_u32 s{sCNT}, s{sCNT}, 1')
            a(f's_cmp_lg_u32 s{sCNT}, 0')
            a(f's_cbranch_scc1 {L}')
    def drain(frm, to=0, gran=4):
        k = frm
        while k > to:
            d = min(gran, k - to); k -= d
            prog(d, k)
    def srd(base, size):
        a(f's_mov_b32 s{SRD}, s{base}')
        a(f's_mov_b32 s{SRD+1}, s{base+1}')
        a(f's_mov_b32 s{SRD+2}, {size}')
    tha, thb, th1, th2 = o['tha'], o['thb'], o['th1'], o['th2']
    a(f'v_lshrrev_b32 v8, 5, v{vLANE}')
    a(f'v_and_b32 v9, 31, v{vLANE}')
    a('v_lshlrev_b32 v9, 4, v9')
    a(f'v_lshl_add_u32 v{vA[0]}, v8, 13, v9')
    a('v_lshlrev_b32 v8, 5, v8')
    a(f'v_xor_b32 v28, v8, v{vA[0]}')
    for k in range(1, 4): a(f'v_xor_b32 v{28+k}, {k << 6}, v28')
    a(f's_and_b32 s{sT2}, s{sI}, 7')
    a(f's_xor_b32 s{sT0}, s{sH}, 1')
    a(f's_lshl_b32 s{sT0}, s{sT0}, 9')
    a(f's_lshl_b32 s{sOFF}, s{sT2}, 19')
    a(f's_add_u32 s{sOFF}, s{sOFF}, s{sT0}')
    a(f's_mov_b32 m0, {L1_GU}')
    a(f'v_mov_b32 v{vCNT}, {-th1}')
    a('s_waitcnt lgkmcnt(0)')
    srd(8, 3670016)
    a(f's_load_dword s{sEP}, s[28:29], 0')
    a('s_barrier')
    stamp(7)
    run([(28 + k, 16384) for k in range(4)], 32, th1)
    stamp(8)
    for k in range(1, 8): a(f'v_xor_b32 v{vA[k]}, {k << 5}, v{vA[0]}')
    a(f's_lshl_b32 s{sT3}, s{sT2}, 20')
    a(f's_lshl_b32 s{sT0}, s{sH}, 9')
    a(f's_add_u32 s{sT3}, s{sT3}, s{sT0}')
    a(f's_mov_b32 s{sOFF}, s{sT3}')
    a(f's_mov_b32 m0, {L1_WUK}')
    srd(10, 8388608)
    stamp(9)
    run([(vA[k >> 1], 16384) for k in range(16)], 64, th1)
    stamp(1)
    a('s_branch L_loader1b')
    a.label('L_loader2')
    a('s_waitcnt lgkmcnt(0)')
    a(f's_load_dword s{sEP}, s[28:29], 0')
    a('s_barrier')
    a('s_branch L_loader2b')

    a.label('L_comp1')
    stamp(1)
    lane_consts()
    vA1, vB1, vXB = 29, 30, 31
    a(f'v_and_b32 v8, 7, v{vROW}')
    a(f'v_lshl_add_u32 v9, v{vROW}, 9, v{vC4}')
    a(f'v_add_u32 v9, {L1_GU}, v9')
    for t in range(4):
        a(f's_lshl_b32 s{sT0}, s{sW}, 2')
        a(f's_add_u32 s{sT0}, s{sT0}, {t}')
        a(f'v_xor_b32 v11, s{sT0}, v8')
        a(f'v_lshl_add_u32 v{84+t}, v11, 5, v9')
    a(f'v_bfe_u32 v28, v{vLANE}, 2, 1')
    a(f'v_mul_u32_u24 v{vXB}, 896, v28')
    a(f'v_lshl_add_u32 v{vXB}, v{vG}, 3, v{vXB}')
    a(f'v_add_u32 v{vXB}, {L_XN}, v{vXB}')
    a(f's_and_b32 s{sT3}, s{sI}, 7')
    a(f's_lshl_b32 s{sT0}, s{sT3}, 7')
    a(f'v_add_u32 v{vB1}, s{sT0}, v{vXB}')
    a(f's_xor_b32 s{sT2}, s{sHL}, 1')
    sexp(sT0, [(sT2, BLK), (sB3, 16384), (sW, 4096), (sT3, 512)], WS_Q1)
    a(f'v_add_u32 v54, s{sT0}, v{vL16}')
    a(f'v_add_u32 v55, {Q1L}, v54')
    setexec(0xffffffff)
    a('global_load_dwordx4 v[244:247], v55, s[28:29] sc1')
    setexec(-1)
    a(f'v_add_u32 v25, {L_XN}, v10')
    for i in range(4): a(f'v_mov_b32 v{48+i}, 0')
    U = 32
    a('s_waitcnt vmcnt(1) lgkmcnt(0)')
    stamp(11)
    tags()
    a('v_lshlrev_b32 v24, 16, v24')
    for i in range(8):
        a(f'v_lshlrev_b32 v{U+2*i}, 16, v{X+i}')
        a(f'v_and_b32 v{U+2*i+1}, 0xffff0000, v{X+i}')
    setexec(M_LN)
    for i in range(8):
        t = 52 if i & 1 else 56
        a(f'v_pk_add_f32 v[{t}:{t+1}], v[{U+2*i}:{U+2*i+1}], v[24:25] op_sel_hi:[1,0] neg_lo:[0,1] neg_hi:[0,1]')
        if i > 0:
            tp_ = 52 if (i - 1) & 1 else 56
            a(f'v_pk_add_f32 v[48:49], v[48:49], v[{tp_}:{tp_+1}]')
            a(f'v_pk_fma_f32 v[50:51], v[{tp_}:{tp_+1}], v[{tp_}:{tp_+1}], v[50:51]')
    a('v_pk_add_f32 v[48:49], v[48:49], v[52:53]')
    a('v_pk_fma_f32 v[50:51], v[52:53], v[52:53], v[50:51]')
    setexec(-1)
    a('v_add_f32 v48, v48, v49')
    a('v_add_f32 v50, v50, v51')
    allred_row([48, 50], 'v_add_f32')
    allred_swap([48, 50], [49, 51], 'v_add_f32', 16)
    a(f'v_mul_f32 v48, {f32(1.0/448)}, v48')
    a(f'v_mul_f32 v50, {f32(1.0/448)}, v50')
    a('v_fma_f32 v50, -v48, v48, v50')
    a('v_add_f32 v48, v48, v24')
    a('v_max_f32 v50, 0, v50')
    bf16r(48, 48)
    bf16r(50, 50)
    a(f'v_add_f32 v50, {f32(1e-5)}, v50')
    bf16r(50, 50)
    a('v_sqrt_f32 v50, v50')
    for i in range(8):
        a(f'v_pk_add_f32 v[{U+2*i}:{U+2*i+1}], v[{U+2*i}:{U+2*i+1}], v[48:49] op_sel_hi:[1,0] neg_lo:[0,1] neg_hi:[0,1]')
    bf16r(50, 50)
    a('v_rcp_f32 v50, v50')
    for i in range(8): a(f'v_cvt_pk_bf16_f32 v{X+i}, v{U+2*i}, v{U+2*i+1}')
    for i in range(8):
        a(f'v_lshlrev_b32 v{U+2*i}, 16, v{X+i}')
        a(f'v_and_b32 v{U+2*i+1}, 0xffff0000, v{X+i}')
    for i in range(8):
        a(f'v_pk_mul_f32 v[{U+2*i}:{U+2*i+1}], v[{U+2*i}:{U+2*i+1}], v[50:51] op_sel_hi:[1,0]')
    for i in range(8): a(f'v_cvt_pk_bf16_f32 v{X+i}, v{U+2*i}, v{U+2*i+1}')
    setexec(M_LN)
    a(f'ds_write_b128 v25, v[{X}:{X+3}]')
    a(f'ds_write_b128 v25, v[{X+4}:{X+7}] offset:16')
    setexec(-1)
    a(f's_cmp_eq_u32 s{sT3}, 7')
    a('s_cbranch_scc1 L_nop1')
    XB = 64
    for s in range(2):
        a(f'ds_read2_b64 v[{XB+4*s}:{XB+4*s+3}], v{vB1} offset0:{8*s} offset1:{8*s+4}')
    stamp(12)
    wait_prog(32)
    WA = 96; D = 32
    for s in range(2):
        for t in range(4):
            TR(WA + 16 * s + 4 * t, 84 + t, (32 * s) * 512)
            TR(WA + 16 * s + 4 * t + 2, 84 + t, (32 * s + 16) * 512)
    for s in range(2):
        for t in range(4):
            a(f's_waitcnt lgkmcnt({14 - 8 * s - 2 * t})')
            MF(D + 4 * t, XB + 4 * s, WA + 16 * s + 4 * t, None if s == 0 else D + 4 * t)
    for t in range(4): a(f'v_bfi_b32 v{48+t}, s{sMASK}, v{vTAG}, v{D+4*t}')
    setexec(0xffffffff)
    a('global_store_dwordx4 v55, v[48:51], s[28:29]')
    setexec(-1)
    a.label('L_nop1')
    stamp(10)
    a(f's_xor_b32 s{sGI}, s{sU}, 64')
    a(f's_cmp_lt_u32 s{sGI}, 98')
    a(f's_cselect_b32 s{sF}, 32, 0')
    sexp(sT0, [(sHL, BLK), (sB3, 16384), (sW, 4096)], WS_Q1)
    a(f'v_add_u32 v57, s{sT0}, v{vL16}')
    a(f'v_add_u32 v55, {Q1L}, v57')
    a(f's_mov_b32 s{sCNT}, {64 if o["local"] else 1}')
    sexp(sT0, [(sW, 128)], L1_Q)
    a(f'v_and_b32 v56, 1, v{vG}')
    a('v_lshlrev_b32 v56, 9, v56')
    a(f'v_lshl_add_u32 v56, v{vL15}, 1, v56')
    a(f'v_add_u32 v56, s{sT0}, v56')
    a(f'v_and_b32 v8, 7, v{vLANE}')
    a(f'v_bfe_u32 v9, v{vLANE}, 3, 1')
    a('v_lshlrev_b32 v9, 10, v9')
    a('v_lshl_add_u32 v10, v8, 11, v9')
    a(f's_lshl_b32 s{sT0}, s{sW}, 14')
    a(f'v_add_u32 v10, s{sT0}, v10')
    a('v_lshlrev_b32 v8, 1, v8')
    for s3 in range(4):
        a(f'v_add_u32 v9, {4*s3}, v{vG}')
        a('v_xor_b32 v9, v9, v8')
        a(f'v_lshl_add_u32 v{84+s3}, v9, 4, v10')
    a('v_lshlrev_b32 v88, 9, v28')
    a(f'v_lshl_add_u32 v88, v{vG}, 4, v88')
    a(f'v_add_u32 v88, {L1_Q}, v88')
    a(f's_and_b32 s{sT2}, s{sI}, 7')
    sexp(sT0, [(sHL, BLK), (sB3, 8192), (sT2, 512), (sW, 128)], WS_QA)
    a(f'v_lshlrev_b32 v89, 12, v{vG}')
    a(f'v_lshl_add_u32 v89, v{vL15}, 4, v89')
    a(f'v_add_u32 v89, s{sT0}, v89')
    sentinel_addr(90, WS_SN2)
    a(f'v_mov_b32 v70, s{sTAG32}')
    a(f'v_not_b32 v71, s{sTAG32}')
    G = 32; KA = 96; QB = 160; D = 72
    wait_prog(o['h1at'])
    stamp(2)
    L = loop_head2('L_h1')
    a(f's_sub_u32 s{sCNT}, s{sCNT}, 1')
    a(f's_cmp_lg_u32 s{sCNT}, 0')
    a('s_cbranch_scc1 L_h1k')
    a('v_mov_b32 v55, v57')
    a(f's_cmp_eq_u32 s{sT3}, 7')
    a('s_cbranch_scc1 L_h1k')
    setexec(0xffffffff)
    a('global_store_dwordx4 v54, v[48:51], s[28:29] sc1')
    setexec(-1)
    a.label('L_h1k')
    for i in range(4): a(f'v_mov_b32 v{G+12+i}, v{vTAG}')
    for i in range(4):
        if i == 3: setexec(0xffffffff)
        a(f'global_load_dwordx4 v[{G+4*i}:{G+4*i+3}], v55, s[28:29] offset:{1024*i} sc1')
    setexec(-1)
    if o['h1at'] < 96: wait_prog(96)
    for t in range(2):
        for s in range(8):
            r = KA + 32 * t + 4 * s
            a(f'ds_read_b128 v[{r}:{r+3}], v{84 + (s & 3)} offset:{t * 512 + (s >> 2) * 256}')
    a('s_waitcnt vmcnt(0)')
    untag(range(G, G + 16), 64)
    a(f's_cbranch_vccnz {L}')
    stamp(3)
    for i in range(0, 4, 2):
        a(f'v_pk_add_f32 v[{G+i}:{G+i+1}], v[{G+i}:{G+i+1}], v[{G+4+i}:{G+5+i}]')
        a(f'v_pk_add_f32 v[{G+8+i}:{G+9+i}], v[{G+8+i}:{G+9+i}], v[{G+12+i}:{G+13+i}]')
    for i in range(0, 4, 2): a(f'v_pk_add_f32 v[{G+i}:{G+i+1}], v[{G+i}:{G+i+1}], v[{G+8+i}:{G+9+i}]')
    allred_swap([G, G+1, G+2, G+3], [G+4, G+5, G+6, G+7], 'v_add_f32', 32)
    a(f'v_cvt_pk_bf16_f32 v{G}, v{G}, v{G+1}')
    a(f'v_cvt_pk_bf16_f32 v{G+1}, v{G+2}, v{G+3}')
    a(f'ds_write_b16 v56, v{G}')
    a(f'ds_write_b16_d16_hi v56, v{G} offset:32')
    a(f'ds_write_b16 v56, v{G+1} offset:64')
    a(f'ds_write_b16_d16_hi v56, v{G+1} offset:96')
    stage(W_Q)
    a(f's_cmp_eq_u32 s{sT3}, 7')
    a('s_cbranch_scc1 L_q1g')
    setexec(0xffffffff)
    a('global_store_dwordx4 v54, v[48:51], s[28:29] sc1')
    setexec(-1)
    a.label('L_q1g')
    wait_all(W_Q, extra=[f'ds_read_b128 v[{QB+4*s}:{QB+4*s+3}], v88 offset:{s * 64}' for s in range(8)])
    for s in range(8):
        a(f's_waitcnt lgkmcnt({7 - s})')
        for t in range(2): MF(D + 4 * t, QB + 4 * s, KA + 32 * t + 4 * s, None if s == 0 else D + 4 * t)
    stage(W_FREE)
    a(f'v_cvt_pk_bf16_f32 v68, v{D}, v{D+4}')
    a('v_mov_b32_dpp v69, v68 row_ror:8 row_mask:0xf bank_mask:0xf')
    setexec(0x00ff00ff)
    a('global_store_dwordx4 v89, v[68:71], s[28:29] sc1')
    setexec(-1)
    sentinel_put(90, wave=0)
    stamp(4)
    a(f's_getreg_b32 s{sLOC}, hwreg(HW_REG_XCC_ID)')
    sentinel_addr(13, WS_XI1)
    a(f'v_mov_b32 v{vT+1}, s{sLOC}')
    sentinel_put(13, wave=1)

    a(f's_mul_i32 s{sKC}, s{sGI}, 9363')
    a(f's_lshr_b32 s{sKC}, s{sKC}, 16')
    a(f's_mul_i32 s{sCH}, s{sKC}, 7')
    a(f's_sub_u32 s{sCH}, s{sGI}, s{sCH}')
    a(f's_lshl_b32 s{sT0}, s{sCH}, 7')
    a(f'v_add_u32 v{vB1}, s{sT0}, v{vXB}')
    a(f'v_and_b32 v8, 7, v{vROW}')
    a(f'v_lshl_add_u32 v9, v{vROW}, 8, v{vC4}')
    a(f's_lshr_b32 s{sT0}, s{sW}, 1')
    a(f's_lshl_b32 s{sT0}, s{sT0}, 14')
    a(f's_add_u32 s{sT0}, s{sT0}, {L1_GU}')
    a(f'v_add_u32 v9, s{sT0}, v9')
    a(f's_and_b32 s{sT3}, s{sW}, 1')
    for t in range(4):
        a(f's_lshl_b32 s{sT0}, s{sT3}, 2')
        a(f's_add_u32 s{sT0}, s{sT0}, {t}')
        a(f'v_xor_b32 v10, s{sT0}, v8')
        a(f'v_lshl_add_u32 v{72+t}, v10, 5, v9')
    a(f's_lshl_b32 s{sT0}, s{sKC}, 1')
    a(f's_add_u32 s{sT0}, s{sT0}, s{sT3}')
    a(f's_lshl_b32 s{sT0}, s{sT0}, 1')
    a(f'v_bfe_u32 v9, v{vLANE}, 3, 1')
    a(f'v_add_u32 v9, s{sT0}, v9')
    a('v_and_b32 v76, 7, v9')
    a('v_lshlrev_b32 v76, 18, v76')
    a('v_lshrrev_b32 v9, 3, v9')
    a('v_lshl_add_u32 v76, v9, 12, v76')
    a(f'v_lshl_add_u32 v76, v{vG}, 7, v76')
    a(f'v_and_b32 v9, 7, v{vLANE}')
    a('v_lshl_add_u32 v76, v9, 4, v76')
    a(f's_lshr_b32 s{sT3}, s{sW}, 1')
    sexp(sT0, [(sCH, 512), (sT3, 256)], WS_GU)
    a(f'v_add_u32 v76, s{sT0}, v76')
    a(f'v_and_b32 v8, 7, v{vROW}')
    a(f'v_lshrrev_b32 v9, 1, v{vG}')
    a('v_lshl_add_u32 v9, v8, 4, v9')
    a(f'v_lshl_add_u32 v9, v9, 9, v{vC4}')
    for t in range(4):
        a(f's_lshl_b32 s{sT0}, s{sW}, 2')
        a(f's_add_u32 s{sT0}, s{sT0}, {t}')
        a(f'v_xor_b32 v10, s{sT0}, v8')
        a(f'v_lshl_add_u32 v{84+t}, v10, 5, v9')
    sexp(sT0, [(sH, 1 << 16), (sT2, 1 << 13), (sW, 1 << 11)], WS_OW)
    a(f'v_and_b32 v9, 1, v{vG}')
    a('v_lshlrev_b32 v9, 5, v9')
    a(f'v_xor_b32 v80, v9, v{vL16}')
    a(f'v_add_u32 v80, s{sT0}, v80')
    a('v_add_u32 v81, 0x100000, v80')
    sexp(sT3, [(sW, 4096)], L1_OB)
    a(f'v_lshl_add_u32 v92, v{vROW}, 6, v{vC4}')
    a('v_add_u32 v92, v92, v9')
    a(f'v_add_u32 v92, s{sT3}, v92')
    a('v_xor_b32 v93, 32, v92')
    tag8(sT0)
    a(f'v_and_b32 v9, 7, v{vLANE}')
    a(f'v_lshrrev_b32 v20, v9, s{sT0}')
    a('v_and_b32 v20, 1, v20')
    a('v_mul_u32_u24 v20, 0x10001, v20')
    sexp(sT0, [(sMH, 256), (sH, 16)], WS_ST)
    a(f'v_lshrrev_b32 v82, 3, v{vLANE}')
    a('v_lshlrev_b32 v82, 18, v82')
    a('v_lshl_add_u32 v82, v9, 9, v82')
    a(f'v_add_u32 v82, s{sT0}, v82')
    a(f'v_lshlrev_b32 v83, 1, v{vLANE}')
    a(f'v_add_u32 v83, {L1_WT}, v83')
    a('v_lshlrev_b32 v88, 6, v28')
    a(f'v_lshl_add_u32 v88, v{vG}, 3, v88')
    a(f'v_add_u32 v88, {L1_WT}, v88')
    a(f'v_add_u32 v90, {L1_OC}, v{vL16}')
    a(f's_lshl_b32 s{sT0}, s{sW}, 10')
    a(f'v_add_u32 v89, s{sT0}, v90')
    sexp(sT0, [(sHL, BLK), (sB3, 16384), (sW, 4096), (sT2, 256)], WS_CX)
    a(f'v_bfe_u32 v10, v{vLANE}, 3, 1')
    a('v_lshlrev_b32 v91, 11, v10')
    a(f'v_lshl_add_u32 v91, v{vG}, 7, v91')
    a('v_lshl_add_u32 v91, v9, 4, v91')
    a(f'v_add_u32 v91, s{sT0}, v91')
    a(f's_lshl_b32 s{sT0}, s{sW}, 4')
    a(f'v_add_u32 v8, s{sT0}, v{vL15}')
    a('v_lshlrev_b32 v10, 1, v9')
    a(f'v_add_u32 v10, s{sMH}, v10')
    a('v_lshrrev_b32 v8, 3, v8')
    a('v_lshlrev_b32 v8, 18, v8')
    a('v_lshl_add_u32 v79, v10, 7, v8')
    a(f'v_add_u32 v79, {WS_SN3}, v79')
    WB = 48
    for i in range(0, 8, 2): a(f'v_mov_b64 v[{WB+i}:{WB+i+1}], 0')
    sexp(sT0, [(sX8, BLK), (sI, 8192), (sW, 2048)], WS_SX)
    a(f'v_add_u32 v9, s{sT0}, v{vL16}')
    a('global_load_dwordx4 v[32:35], v9, s[28:29] sc1')
    a('global_load_dwordx4 v[36:39], v9, s[28:29] offset:1024 sc1')
    setexec(0xffffffff)
    a('global_load_dwordx4 v[40:43], v91, s[28:29] sc1')
    setexec(-1)
    sexp(sT0, [(sHL, BLK), (sB3, 16384), (sT2, 2048)], WS_CX)
    a(f'v_add_u32 v15, s{sT0}, v{vL16}')
    a('v_lshlrev_b32 v21, 5, v28')
    a(f'v_lshl_add_u32 v21, v{vG}, 2, v21')
    a('v_add_u32 v22, 16, v21')
    a(f'v_and_b32 v8, 3, v{vROW}')
    a(f'v_lshl_add_u32 v9, v8, 3, v{vG}')
    a('v_mul_u32_u24 v9, 896, v9')
    a(f'v_add_u32 v9, v9, v{vC4}')
    a(f'v_add_u32 v9, {L1_WO}, v9')
    PA7 = 232
    for tp in range(7):
        a(f's_mul_i32 s{sT0}, s{sW}, 7')
        a(f's_add_u32 s{sT0}, s{sT0}, {tp}')
        a(f'v_xor_b32 v10, s{sT0}, v8')
        a(f'v_lshl_add_u32 v{PA7+tp}, v10, 5, v9')
    a(f'v_and_b32 v9, 7, v{vROW}')
    a('v_lshlrev_b32 v9, 18, v9')
    a(f'v_lshl_add_u32 v9, v{vC4}, 1, v9')
    a(f'v_lshrrev_b32 v10, 5, v{vLANE}')
    sexp(sT0, [(sW, 16384), (sU, 64)], WS_SP)
    a('v_lshl_add_u32 v23, v10, 13, v9')
    a(f'v_add_u32 v23, s{sT0}, v23')
    sexp(sT0, [(sX8, BLK), (sI, 8192), (sW, 2048)], WS_SP - 8 * 8192)
    a(f'v_add_u32 v25, s{sT0}, v{vL16}')
    sexp(sT0, [(sW, 64)], L1_FIN)
    a(f'v_add_u32 v19, s{sT0}, v{vL16}')
    a(f's_and_b32 s{sT2}, s{sI}, 8')
    sexp(sT0, [(sX8, BLK), (sT2, 128)], WS_XI1)
    a(f'v_and_b32 v18, 7, v{vLANE}')
    a(f'v_lshl_add_u32 v18, v18, 7, s{sT0}')
    a('s_waitcnt vmcnt(0)')
    def frags7(dst, base):
        for tp in range(7):
            TR(dst + 4 * tp, PA7 + tp, base)
            TR(dst + 4 * tp + 2, PA7 + tp, base + 4 * 896)
    def spread(dst, src):
        a(f'ds_bpermute_b32 v{dst}, v21, v{src}')
        a(f'ds_bpermute_b32 v{dst+1}, v21, v{src+1}')
        a(f'ds_bpermute_b32 v{dst+2}, v22, v{src}')
        a(f'ds_bpermute_b32 v{dst+3}, v22, v{src+1}')
    def out7(D5, vaddr):
        for t in range(4): a(f'v_bfi_b32 v{56+t}, s{sMASK}, v{vTAG}, v{D5+4*t}')
        a('s_mov_b32 exec_lo, 0')
        for t in range(3): a(f'v_bfi_b32 v{56+t}, s{sMASK}, v{vTAG}, v{D5+16+4*t}')
        a('s_mov_b32 exec_lo, -1')
        a(f'global_store_dwordx4 v{vaddr}, v[56:59], s[28:29] sc1')
    a(f's_cmp_lg_u32 s{sF}, 32')
    a('s_cbranch_scc1 L_nogu')
    for s in range(2):
        a(f'ds_read2_b64 v[{32+4*s}:{32+4*s+3}], v{vB1} offset0:{8*s} offset1:{8*s+4}')
    wait_prog(128, slp=2)
    stamp(13)
    for t in range(4):
        for s in range(2):
            TR(96 + 8 * t + 4 * s, 72 + t, (32 * s) * 256)
            TR(96 + 8 * t + 4 * s + 2, 72 + t, (32 * s + 16) * 256)
    a('s_waitcnt lgkmcnt(0)')
    for s in range(2):
        for t in range(4): MF(160 + 4 * t, 32 + 4 * s, 96 + 8 * t + 4 * s, None if s == 0 else 160 + 4 * t)
    for t in range(4): a(f'v_bfi_b32 v{56+t}, s{sMASK}, v{vTAG}, v{160+4*t}')
    setexec(0xffffffff)
    a('global_store_dwordx4 v76, v[56:59], s[28:29] sc1')
    setexec(-1)
    stamp(14)
    a.label('L_nogu')
    a('global_load_dwordx2 v[16:17], v18, s[28:29] sc1')
    UV = 96
    a(f's_add_u32 s{sT2}, s{sF}, 160')
    wait_prog(f's{sT2}', slp=1)
    stamp(5)
    for t in range(4):
        for q in range(4):
            TR(UV + 16 * t + 4 * q, 84 + t, (4 * q) * 512)
            TR(UV + 16 * t + 4 * q + 2, 84 + t, (4 * q + 2) * 512)
    WO = 192
    a(f's_add_u32 s{sT2}, s{sT2}, 28')
    if not o['wo2']:
        wait_prog(f's{sT2}')
        frags7(WO, 0)
    a('s_waitcnt vmcnt(0)')
    a(f'v_xor_b32 v16, s{sTAG32}, v16')
    a(f'v_xor_b32 v17, s{sLOC}, v17')
    a('v_or_b32 v16, v16, v17')
    a('v_cmp_ne_u32 vcc, 0, v16')
    a('s_cmp_eq_u64 vcc, 0')
    a(f's_cselect_b32 s{sLOC}, {o["local"]}, 0')
    stamp(15)
    sentinel_poll(79, 0xffff)
    a('s_waitcnt lgkmcnt(0)')
    stage(W_S3)
    wait_all(W_S3)
    stamp(6)
    def o_dma():
        for b in range(2):
            a(f's_add_u32 m0, s{sT3}, {b * 2048}')
            for i in range(2):
                a(f'global_load_lds_dwordx4 v{80+b}, s[28:29] offset:{i*1024} sc1')
    a(f's_cmp_lg_u32 s{sW}, 0')
    a('s_cbranch_scc1 L_h3r_f')
    L = loop_head2('L_h3')
    a('global_load_dwordx4 v[64:67], v82, s[28:29] sc1')
    o_dma()
    stage(W_H3)
    a('s_waitcnt vmcnt(4)')
    a(f'v_xor_b32 v66, s{sTAG32}, v66')
    a(f'v_xnor_b32 v67, s{sTAG32}, v67')
    a('v_or_b32 v67, v66, v67')
    a('v_mov_b32 v66, v64')
    a('v_cmp_ne_u32 vcc, 0, v67')
    a(f's_cbranch_vccnz {L}')
    allred_row([66], 'v_max_f32')
    allred_swap([66], [67], 'v_max_f32', 16)
    a('v_sub_f32 v64, v64, v66')
    a('v_exp_f32 v64, v64')
    a('v_mul_f32 v65, v64, v65')
    allred_row([65], 'v_add_f32')
    allred_swap([65], [67], 'v_add_f32', 16)
    a('v_rcp_f32 v65, v65')
    a('v_mul_f32 v64, v64, v65')
    a('v_cvt_pk_bf16_f32 v64, v64, v64')
    a('ds_write_b16 v83, v64')
    stage(W_WT)
    a('s_branch L_h3w')
    a.label('L_h3r')
    a(f's_sub_u32 s{sBUD}, s{sBUD}, 1')
    a('s_cbranch_scc1 L_end')
    o_dma()
    a('s_branch L_h3w')
    a.label('L_h3r_f')
    o_dma()
    stage(W_H3)
    a.label('L_h3w')
    OA = 32
    a('s_waitcnt vmcnt(0)')
    for b in range(2):
        for tl in range(2):
            TR(OA + 8 * b + 4 * tl, 92 + tl, b * 2048)
            TR(OA + 8 * b + 4 * tl + 2, 92 + tl, b * 2048 + 1024)
    a('s_waitcnt lgkmcnt(0)')
    for i in range(16): a(f'v_xor_b32 v{OA+i}, v{OA+i}, v20')
    a(f'v_or3_b32 v68, v{OA}, v{OA+1}, v{OA+2}')
    for i in range(3, 15, 2): a(f'v_or3_b32 v68, v68, v{OA+i}, v{OA+i+1}')
    a(f'v_or_b32 v68, v68, v{OA+15}')
    a('v_and_b32 v68, 0x00010001, v68')
    a('v_cmp_ne_u32 vcc, 0, v68')
    a('s_cbranch_vccnz L_h3r')
    stamp(7)
    wait_w0(W_WT, extra=['ds_read2_b64 v[60:63], v88 offset0:0 offset1:4'])
    a('s_waitcnt lgkmcnt(0)')
    for b in range(2):
        setexec(0x0f0f0f0f0f0f0f0f << (4 * b))
        a(f'v_mov_b64 v[{WB+4*b}:{WB+4*b+1}], v[60:61]')
        a(f'v_mov_b64 v[{WB+4*b+2}:{WB+4*b+3}], v[62:63]')
    setexec(-1)
    for b in range(2):
        for tl in range(2):
            MF(56 + 4 * tl, OA + 8 * b + 4 * tl, WB + 4 * b, None if b == 0 else 56 + 4 * tl)
    for i in range(4): a(f'v_cvt_pk_bf16_f32 v{64+i}, v{56+2*i}, v{56+2*i+1}')
    a('ds_write_b128 v89, v[64:67]')
    stage(W_OC)
    wait_all(W_OC, extra=[f'ds_read_b128 v[{32+4*q}:{32+4*q+3}], v90 offset:{q*1024}' for q in range(4)])
    stamp(8)
    D4 = 160
    for q in range(4):
        a(f's_waitcnt lgkmcnt({3 - q})')
        for t in range(4):
            MF(D4 + 4 * t, 32 + 4 * q, UV + 16 * t + 4 * q, None if q == 0 else D4 + 4 * t)
    for t in range(4): a(f'v_bfi_b32 v{56+t}, s{sMASK}, v{vTAG}, v{D4+4*t}')
    setexec(0xffffffff)
    store_flavoured(['global_store_dwordx4 v91, v[56:59], s[28:29]'], 'cx')
    setexec(-1)
    stamp(9)
    if o['wo2']:
        wait_prog(f's{sT2}')
        frags7(WO, 0)
    a('s_waitcnt vmcnt(0)')
    L = loop_head2('L_h4')
    for i in range(2):
        a(f'global_load_dwordx4 v[{32+4*i}:{32+4*i+3}], v15, s[28:29] offset:{1024*i} sc1')
    a('s_waitcnt vmcnt(0)')
    untag(range(32, 40), 48)
    a(f's_cbranch_vccnz {L}')
    stamp(17)
    stage(W_H4)
    for i in range(0, 4, 2): a(f'v_pk_add_f32 v[{32+i}:{33+i}], v[{32+i}:{33+i}], v[{36+i}:{37+i}]')
    allred_swap([32, 33, 34, 35], [36, 37, 38, 39], 'v_add_f32', 16)
    allred_swap([32, 33, 34, 35], [36, 37, 38, 39], 'v_add_f32', 32)
    a('v_cvt_pk_bf16_f32 v32, v32, v33')
    a('v_cvt_pk_bf16_f32 v33, v34, v35')
    spread(36, 32)
    a('s_waitcnt lgkmcnt(0)')
    for tp in range(7): MF(160 + 4 * tp, 36, WO + 4 * tp, None)
    out7(160, 23)
    stamp(18)
    a(f's_cmp_lt_u32 s{sU}, 64')
    a('s_cbranch_scc1 L_cdone')
    a('s_waitcnt vmcnt(0)')
    stamp(16)
    L = loop_head2('L_h5')
    for i in range(2):
        a(f'global_load_dwordx4 v[{32+4*i}:{32+4*i+3}], v25, s[28:29] offset:{1024*i} sc1')
    a('s_waitcnt vmcnt(0)')
    untag(range(32, 40), 48)
    a(f's_cbranch_vccnz {L}')
    stamp(19)
    for i in range(0, 4, 2): a(f'v_pk_add_f32 v[{32+i}:{33+i}], v[{32+i}:{33+i}], v[{36+i}:{37+i}]')
    allred_row([32, 33, 34, 35], 'v_add_f32', shifts=(4, 8))
    allred_swap([32, 33, 34, 35], [36, 37, 38, 39], 'v_add_f32', 16)
    allred_swap([32, 33, 34, 35], [36, 37, 38, 39], 'v_add_f32', 32)
    setexec(15)
    a('ds_write_b128 v19, v[32:35]')
    setexec(-1)
    stage(W_FIN)
    a.label('L_cdone')
    dump_stamps(20)
    a('s_endpgm')
    flush_tails()

    a.label('L_comp2')
    stamp(1)
    lane_consts()
    a(f's_and_b32 s{sKC}, s{sX8}, 3')
    a(f's_lshl_b32 s{sKC}, s{sKC}, 3')
    a(f's_lshr_b32 s{sT0}, s{sI}, 1')
    a(f's_add_u32 s{sKC}, s{sKC}, s{sT0}')
    a(f's_and_b32 s{sCH}, s{sI}, 1')
    a(f's_mov_b32 s{sSC}, {f32(LOG2E/16)}')
    a(f's_getreg_b32 s{sLOC}, hwreg(HW_REG_XCC_ID)')
    sexp(sT0, [(sX8, BLK), (sI, 8192), (sW, 2048)], WS_SX)
    a(f'v_add_u32 v57, s{sT0}, v{vL16}')
    a('v_xor_b32 v58, 0x2000, v57')
    a(f's_xor_b32 s{sT2}, s{sI}, 1')
    sexp(sT0, [(sX8, BLK), (sT2, 128)], WS_XID)
    a(f'v_mov_b32 v59, s{sT0}')
    a(f'v_lshlrev_b32 v61, 2, v{vL15}')
    a(f'v_add_u32 v61, {L2_MX}, v61')
    a('v_mov_b32 v9, 0xff800000')
    a('ds_write_b32 v61, v9')
    a('s_waitcnt lgkmcnt(0)')
    tags()
    a(f's_cmp_lg_u32 s{sW}, 0')
    a('s_cbranch_scc1 L_noxid')
    sentinel_addr(13, WS_XID)
    a(f'v_mov_b32 v{vT+1}, s{sLOC}')
    sentinel_put(13)
    a.label('L_noxid')
    tag8(sT2)
    for i in range(4):
        a(f's_lshr_b32 s{sT0}, s{sT2}, {2*i}')
        a(f's_and_b32 s{sT1}, s{sT0}, 2')
        a(f's_lshl_b32 s{sT1}, s{sT1}, 15')
        a(f's_and_b32 s{sT0}, s{sT0}, 1')
        a(f's_or_b32 s{sT0}, s{sT0}, s{sT1}')
        a(f'v_mov_b32 v{20+i}, s{sT0}')
    sexp(sT0, [(sB3, 1 << 20), (sCH, 1 << 15), (sW, 1 << 13), (sKC, 64)], WS_OW)
    a(f'v_lshlrev_b32 v28, 18, v{vG}')
    a(f'v_bfe_u32 v9, v{vLANE}, 2, 2')
    a('v_lshl_add_u32 v28, v9, 11, v28')
    a(f'v_lshl_add_u32 v28, v{vC4}, 1, v28')
    a(f'v_add_u32 v28, s{sT0}, v28')
    for r in range(1, 4): a(f'v_add_u32 v{28+r}, {r << 16}, v28')
    sexp(sT0, [(sX8, BLK), (sI, 256)], WS_ST)
    a(f'v_add_u32 v25, s{sT0}, v{vL16}')
    sentinel_addr(24, WS_SN3)
    a(f'v_and_b32 v8, 7, v{vLANE}')
    a('v_lshlrev_b32 v8, 1, v8')
    a(f's_lshl_b32 s{sT0}, s{sW}, 14')
    for s3 in range(4):
        a(f'v_add_u32 v9, {4*s3}, v{vG}')
        a('v_xor_b32 v9, v9, v8')
        a('v_lshlrev_b32 v9, 4, v9')
        a(f'v_lshl_add_u32 v9, v{vL15}, 10, v9')
        a(f'v_add_u32 v{40+s3}, {L2_QF}, v9')
        a(f'v_add_u32 v{44+s3}, s{sT0}, v9')
        a(f'v_add_u32 v{16+s3}, 0x10000, v{44+s3}')
    a(f's_and_b32 s{sT2}, s{sW}, 1')
    a(f's_lshr_b32 s{sT3}, s{sW}, 1')
    sexp(sT0, [(sT2, 4 * BLK), (sT3, 8192), (sB3, 4096), (sCH, 2048)], WS_QA)
    a(f'v_add_u32 v48, s{sT0}, v{vL16}')
    for i in range(1, 4): a(f'v_add_u32 v{48+i}, {BLK*i}, v48')
    a(f'v_lshrrev_b32 v8, 1, v{vLANE}')
    a(f'v_and_b32 v10, 1, v{vLANE}')
    for i in range(4):
        a(f's_lshl_b32 s{sT0}, s{sW}, 2')
        a(f's_add_u32 s{sT0}, s{sT0}, {i}')
        a(f's_and_b32 s{sT1}, s{sT0}, 7')
        a(f's_lshl_b32 s{sT1}, s{sT1}, 1')
        a(f'v_xor_b32 v9, s{sT1}, v8')
        a('v_lshlrev_b32 v9, 4, v9')
        a('v_lshl_add_u32 v9, v10, 3, v9')
        a(f's_lshl_b32 s{sT0}, s{sT0}, 10')
        a(f's_add_u32 s{sT0}, s{sT0}, {L2_QF}')
        a(f'v_add_u32 v{52+i}, s{sT0}, v9')
    a(f's_lshl_b32 s{sT0}, s{sW}, 2')
    a(f'v_lshrrev_b32 v8, 2, v{vL15}')
    a(f'v_add_u32 v8, s{sT0}, v8')
    a('v_and_b32 v9, 1, v8')
    a('v_lshlrev_b32 v9, 3, v9')
    a(f'v_and_b32 v10, 3, v{vL15}')
    a('v_add_u32 v9, v9, v10')
    a(f's_lshl_b32 s{sT0}, s{sCH}, 2')
    a(f'v_add_u32 v9, s{sT0}, v9')
    a('v_lshrrev_b32 v8, 1, v8')
    a('v_lshlrev_b32 v8, 18, v8')
    a('v_lshl_add_u32 v56, v9, 7, v8')
    a(f'v_add_u32 v56, {WS_SN2}, v56')
    a(f'v_lshlrev_b32 v0, 2, v{vLANE}')
    a(f'v_add_u32 v0, {L2_MW}, v0')
    a(f's_lshl_b32 s{sT0}, s{sW}, 8')
    a(f'v_add_u32 v60, s{sT0}, v0')
    a(f'v_add_u32 v63, {L2_P}, v{vL16}')
    a(f's_lshl_b32 s{sT0}, s{sW}, 10')
    a(f'v_add_u32 v62, s{sT0}, v63')
    a(f'v_mov_b32 v36, s{sTAG32}')
    a(f'v_not_b32 v37, s{sTAG32}')
    G = 64; CA = 96; CB = 160; QF = 224; SD = 32
    wait_prog(o['h2at'], slp=1)
    a('s_branch L_h2_first')
    a.label('L_h2')
    sentinel_poll(56, 0xffff)
    a.label('L_h2_first')
    stamp(5)
    for i in range(4):
        a(f'global_load_dwordx4 v[{G+8*i}:{G+8*i+3}], v{48+i}, s[28:29] sc1')
        a(f'global_load_dwordx4 v[{G+8*i+4}:{G+8*i+7}], v{48+i}, s[28:29] offset:1024 sc1')
    a('global_load_dwordx2 v[34:35], v59, s[28:29] sc1')
    assert o['h2at'] >= 64
    for s in range(16):
        a(f'ds_read_b128 v[{CA+4*s}:{CA+4*s+3}], v{44 + (s & 3)} offset:{(s >> 2) * 256}')
    wait_prog(128)
    for s in range(16):
        a(f'ds_read_b128 v[{CB+4*s}:{CB+4*s+3}], v{16 + (s & 3)} offset:{(s >> 2) * 256}')
    a('v_mov_b32 v32, 0')
    for k in range(8):
        a(f's_waitcnt vmcnt({8 - k})')
        a(f'ds_write_b64 v{52 + (k >> 1)}, v[{G+4*k}:{G+4*k+1}] offset:{512 * (k & 1)}')
        a(f'v_bitop3_b32 v32, v{G+4*k+2}, v36, v32 bitop3:0xbe')
        a(f'v_bitop3_b32 v32, v{G+4*k+3}, v37, v32 bitop3:0xbe')
    a('v_cmp_ne_u32 vcc, 0, v32')
    a('s_cbranch_vccnz L_h2')
    stage(A_QA)
    stamp(6)
    a(f'v_and_b32 v10, 7, v{vROW}')
    a(f'v_lshl_add_u32 v9, v{vROW}, 10, v{vC4}')
    a(f's_lshl_b32 s{sT0}, s{sW}, 8')
    a(f'v_add_u32 v9, s{sT0}, v9')
    def qreg(s): return (QF + 4 * s) if s < 8 else (G + 4 * (s - 8))
    def qrd(s): return f'ds_read_b128 v[{qreg(s)}:{qreg(s)+3}], v{40 + (s & 3)} offset:{(s >> 2) * 256}'
    wait_all(A_QA, extra=[qrd(s) for s in range(8)])
    stamp(7)
    for s in range(8, 16): a(qrd(s))
    def pareg(ct, ks):
        n = ct * 4 + ks
        st = n >> 1
        return (CA if n & 1 == 0 else CB) + 4 * st
    side = ['s_waitcnt vmcnt(0)', f'v_xor_b32 v34, s{sTAG32}, v34', f'v_xor_b32 v35, s{sLOC}, v35', 'v_or_b32 v34, v34, v35',
            'v_cmp_ne_u32 vcc, 0, v34', 's_cmp_eq_u64 vcc, 0', f's_cselect_b32 s{sLOC}, {o["local"]}, 0']
    for x in side: a(x)
    addr = []
    for t in range(8):
        addr += [f'v_xor_b32 v11, {t}, v10', f'v_lshl_add_u32 v{44+t}, v11, 5, v9']
    for t in range(4): addr += [f'v_add_u32 v{16+t}, 0x10000, v{44+t}']
    for t in range(4, 8): addr += [f'v_add_u32 v{48+t}, 0x10000, v{44+t}']
    def hi(ct): return 16 + ct if ct < 4 else 48 + ct
    trl = []
    for ct in range(8):
        for ks in range(4):
            trl += [trs(pareg(ct, ks), 44 + ct, ks * 16384), trs(pareg(ct, ks) + 2, hi(ct), ks * 16384)]
    for s in range(16):
        if s < 8: a(f's_waitcnt lgkmcnt({15 - s})')
        elif s == 8: a('s_waitcnt lgkmcnt(0)')
        MF(SD, CA + 4 * s, qreg(s), None if s == 0 else SD)
        if s < 8:
            for _ in range(2): a(addr.pop(0))
        else:
            for _ in range(2): a(trl.pop(0))
        MF(SD + 4, CB + 4 * s, qreg(s), None if s == 0 else SD + 4)
        if s < 8: a(addr.pop(0))
        else:
            for _ in range(2): a(trl.pop(0))
    assert not addr and len(trl) == 32
    for _ in range(6): a(trl.pop(0))
    for i in range(8): a(f'v_bfi_b32 v{G+i}, s{sMASK}, v{vTAG}, v{SD+i}')
    store_flavoured([f'global_store_dwordx4 v57, v[{G}:{G+3}], s[28:29]', f'global_store_dwordx4 v57, v[{G+4}:{G+7}], s[28:29] offset:1024'], 'sx')
    stamp(8)
    for x in trl: a(x)
    stamp(9)
    G2 = 72
    L = loop_head2('L_h25')
    a(f'global_load_dwordx4 v[{G2}:{G2+3}], v58, s[28:29] sc1')
    a(f'global_load_dwordx4 v[{G2+4}:{G2+7}], v58, s[28:29] offset:1024 sc1')
    a('s_waitcnt vmcnt(0)')
    untag(range(G2, G2 + 8), 16)
    a(f's_cbranch_vccnz {L}')
    stamp(10)
    for i in range(0, 8, 2): a(f'v_pk_add_f32 v[{SD+i}:{SD+i+1}], v[{SD+i}:{SD+i+1}], v[{G2+i}:{G2+i+1}]')
    a(f'v_max3_f32 v16, v{SD}, v{SD+1}, v{SD+2}')
    a(f'v_max3_f32 v17, v{SD+3}, v{SD+4}, v{SD+5}')
    a(f'v_max3_f32 v16, v16, v{SD+6}, v{SD+7}')
    a('v_max_f32 v16, v16, v17')
    a(f'v_mul_f32 v16, s{sSC}, v16')
    a('v_ceil_f32 v16, v16')
    a('ds_max_f32 v61, v16')
    a('ds_write_b32 v60, v16')
    for i in range(8): a(f'v_fma_f32 v{SD+i}, v{SD+i}, s{sSC}, -v16')
    for i in range(8): a(f'v_exp_f32 v{SD+i}, v{SD+i}')
    for i in range(4): a(f'v_cvt_pk_bf16_f32 v{G+i}, v{SD+2*i}, v{SD+2*i+1}')
    a(f'ds_write_b128 v62, v[{G}:{G+3}]')
    stage(A_P)
    PB = 72
    wait_all(A_P, extra=['ds_read_b32 v32, v61', 'ds_read2st64_b32 v[16:17], v0 offset0:0 offset1:1', 'ds_read2st64_b32 v[18:19], v0 offset0:2 offset1:3']
             + [f'ds_read_b128 v[{PB+4*ks}:{PB+4*ks+3}], v63 offset:{ks*1024}' for ks in range(4)])
    def resc(ks):
        return [f'v_sub_f32 v{16+ks}, v32, v{16+ks}', f'v_min_f32 v{16+ks}, 0x437f0000, v{16+ks}', f'v_cvt_u32_f32 v{16+ks}, v{16+ks}',
                f'v_mul_u32_u24 v{16+ks}, 0x800080, v{16+ks}'] + [f'v_pk_sub_u16 v{PB+4*ks+i}, v{PB+4*ks+i}, v{16+ks} clamp' for i in range(4)]
    a('s_waitcnt lgkmcnt(3)')
    for x in resc(0): a(x)
    OD = 224; OG = 40
    a(f's_mov_b32 s{sT3}, 0x00010001')
    pend = ['s_waitcnt lgkmcnt(0)'] + resc(1) + resc(2) + resc(3)
    for ct in range(8):
        MF(OD + 4 * ct, PB, pareg(ct, 0), None)
        for _ in range(4 if ct == 0 else 3): a(pend.pop(0))
    assert not pend
    def epi(tp):
        out = [f'v_cvt_pk_bf16_f32 v{OG+4*r+tp}, v{OD+8*tp+r}, v{OD+8*tp+4+r}' for r in range(4)]
        out += [f'v_bfi_b32 v{OG+4*r+tp}, s{sT3}, v{20+tp}, v{OG+4*r+tp}' for r in range(4)]
        return out
    for tp in range(4):
        k = 0
        for ks in range(1, 4):
            for c2 in range(2):
                ct = 2 * tp + c2
                MF(OD + 4 * ct, PB + 4 * ks, pareg(ct, ks), OD + 4 * ct)
                k += 1
                if k >= 4:
                    for _ in range(3):
                        if pend: a(pend.pop(0))
        assert not pend
        pend = epi(tp)
        if tp == o['sn3at']: sentinel_put(24, wave=1)
    a(f's_cmp_lg_u32 s{sW}, 0')
    a('s_cbranch_scc1 L_nol')
    for i in range(4): a(f'v_mov_b32 v{16+i}, 0x3f803f80')
    for ks in range(4): MF(64, 16, PB + 4 * ks, None if ks == 0 else 64)
    a.label('L_nol')
    for r in range(4):
        a(pend[r]); a(pend[4 + r])
        a(f'global_store_dwordx4 v{28+r}, v[{OG+4*r}:{OG+4*r+3}], s[28:29] sc1')
    a(f's_cmp_lg_u32 s{sW}, 0')
    a('s_cbranch_scc1 L_nost')
    a('v_mov_b32 v33, v64')
    a(f'v_mov_b32 v34, s{sTAG32}')
    a(f'v_not_b32 v35, s{sTAG32}')
    setexec(0xffff)
    a('global_store_dwordx4 v25, v[32:35], s[28:29] sc1')
    setexec(-1)
    a.label('L_nost')
    stage(A_O)
    stamp(11)
    a(f's_cmp_lt_u32 s{sU}, 56')
    a('s_cbranch_scc0 L_nodown')
    sexp(sT0, [(sX8, BLK), (sI, 4096)], WS_GU)
    a(f'v_add_u32 v80, s{sT0}, v{vL16}')
    a(f'v_bfe_u32 v9, v{vLANE}, 2, 1')
    a('v_lshlrev_b32 v21, 5, v9')
    a(f'v_lshl_add_u32 v21, v{vG}, 2, v21')
    a('v_add_u32 v22, 16, v21')
    a(f'v_and_b32 v8, 3, v{vROW}')
    a(f'v_lshl_add_u32 v9, v8, 3, v{vG}')
    a('v_mul_u32_u24 v9, 896, v9')
    a(f'v_add_u32 v9, v9, v{vC4}')
    for tp in range(7):
        a(f's_mul_i32 s{sT0}, s{sW}, 7')
        a(f's_add_u32 s{sT0}, s{sT0}, {tp}')
        a(f'v_xor_b32 v10, s{sT0}, v8')
        a(f'v_lshl_add_u32 v{PA7+tp}, v10, 5, v9')
    a(f'v_and_b32 v9, 7, v{vROW}')
    a('v_lshlrev_b32 v9, 18, v9')
    a(f'v_lshl_add_u32 v9, v{vC4}, 1, v9')
    a(f'v_lshrrev_b32 v10, 5, v{vLANE}')
    sexp(sT0, [(sW, 8192), (sU, 64)], WS_FP)
    a('v_lshl_add_u32 v24, v10, 12, v9')
    a(f'v_add_u32 v24, s{sT0}, v24')
    L = loop_head2('L_hf1', slp=4)
    GG = 64
    for i in range(4): a(f'v_mov_b32 v{GG+12+i}, v{vTAG}')
    for i in range(4):
        if i == 3: setexec(0xffffffff)
        a(f'global_load_dwordx4 v[{GG+4*i}:{GG+4*i+3}], v80, s[28:29] offset:{1024*i} sc1')
    setexec(-1)
    a('s_waitcnt vmcnt(0)')
    untag(range(GG, GG + 16), 48)
    a(f's_cbranch_vccnz {L}')
    stamp(2)
    for i in range(0, 4, 2):
        a(f'v_pk_add_f32 v[{GG+i}:{GG+i+1}], v[{GG+i}:{GG+i+1}], v[{GG+4+i}:{GG+5+i}]')
        a(f'v_pk_add_f32 v[{GG+8+i}:{GG+9+i}], v[{GG+8+i}:{GG+9+i}], v[{GG+12+i}:{GG+13+i}]')
    for i in range(0, 4, 2): a(f'v_pk_add_f32 v[{32+i}:{33+i}], v[{GG+i}:{GG+i+1}], v[{GG+8+i}:{GG+9+i}]')
    allred_swap([32, 33, 34, 35], [36, 37, 38, 39], 'v_add_f32', 32)
    for i in range(4): a(f'v_mov_b32 v{36+i}, v{32+i}')
    for i in range(4): a(f'v_permlane16_swap_b32 v{32+i}, v{36+i}')
    for i in range(8): bf16r(32 + i, 32 + i)
    k0 = 0.7978845608028654; k1 = 0.044715
    a(f's_mov_b32 s{sT0}, {f32(k1)}')
    for i in range(4): a(f'v_mul_f32 v{40+i}, v{32+i}, v{32+i}')
    for i in range(4): a(f'v_fma_f32 v{40+i}, v{40+i}, s{sT0}, 1.0')
    for i in range(4): a(f'v_mul_f32 v{40+i}, v{40+i}, v{32+i}')
    for i in range(4): a(f'v_mul_f32 v{40+i}, {f32(-2*k0*LOG2E)}, v{40+i}')
    for i in range(4): a(f'v_exp_f32 v{40+i}, v{40+i}')
    for i in range(4): a(f'v_add_f32 v{40+i}, 1.0, v{40+i}')
    for i in range(4): a(f'v_rcp_f32 v{40+i}, v{40+i}')
    for i in range(4): a(f'v_mul_f32 v{40+i}, v{40+i}, v{32+i}')
    for i in range(4): bf16r(40 + i, 40 + i)
    for i in range(4): a(f'v_mul_f32 v{40+i}, v{40+i}, v{36+i}')
    a('v_cvt_pk_bf16_f32 v32, v40, v41')
    a('v_cvt_pk_bf16_f32 v33, v42, v43')
    spread(36, 32)
    wait_prog(156)
    frags7(96, 0)
    a('s_waitcnt lgkmcnt(0)')
    for tp in range(7): MF(160 + 4 * tp, 36, 96 + 4 * tp, None)
    out7(160, 24)
    stamp(3)
    a.label('L_nodown')
    dump_stamps(12)
    a('s_endpgm')
    flush_tails()

    a.label('L_loader2b')
    for r in range(8):
        a(f'v_xor_b32 v8, {r << 5}, v{vL16}')
        a(f'v_add_u32 v{vA[r]}, {r * 2048}, v8')
    srd(6, 16777216)
    a(f's_lshl_b32 s{sOFF}, s{sX8}, 21')
    a(f's_lshr_b32 s{sT0}, s{sI}, 1')
    a(f's_lshl_b32 s{sT0}, s{sT0}, 18')
    a(f's_add_u32 s{sOFF}, s{sOFF}, s{sT0}')
    a(f's_and_b32 s{sT0}, s{sI}, 1')
    a(f's_lshl_b32 s{sT0}, s{sT0}, 10')
    a(f's_add_u32 s{sOFF}, s{sOFF}, s{sT0}')
    a(f's_mov_b32 m0, {L2_CKV}')
    nslow, nsig = o['nslow'], o['nsig']
    assert nslow % 8 == 0 and nsig % 8 == 0 and nslow <= nsig <= 128
    seq8 = [(vA[k], 16384 if k == 7 else 0) for k in range(8)]
    stamp(1)
    if nslow:
        a(f'v_mov_b32 v{vCNT}, {-tha}')
        run(seq8, nslow, tha)
        a(f'v_subrev_u32 v{vCNT}, {thb - tha}, v{vCNT}')
    else:
        a(f'v_mov_b32 v{vCNT}, {-thb}')
    stamp(2)
    if nsig > nslow: run(seq8, nsig - nslow, thb)
    a('s_waitcnt lgkmcnt(0)')
    tags()
    sentinel_addr(13, WS_SNC)
    sentinel_put(13)
    stamp(3)
    if nsig < 128: run(seq8, 128 - nsig, thb)
    stamp(4)
    drain(thb, 0, 4)
    stamp(5)
    a(f's_cmp_lt_u32 s{sU}, 56')
    a('s_cbranch_scc0 L_ld2_done')
    srd(22, 1605632)
    a(f's_lshr_b32 s{sT0}, s{sU}, 1')
    a(f's_and_b32 s{sT2}, s{sU}, 1')
    sexp(sOFF, [(sT0, 64 * 896), (sT2, 8 * 896)])
    a('s_mov_b32 m0, 0')
    wait_all(o['wdtrig'], slp=1)
    for k in range(4):
        a(f'v_xor_b32 v16, {k << 5}, v{vL16}')
        a('v_add_u32 v17, 4096, v16')
        for i in range(4): LD(16, 1024 * i)
        a('s_add_u32 m0, m0, 4096')
        for i in range(3): LD(17, 1024 * i)
        a('s_add_u32 m0, m0, 3072')
        a(f's_add_u32 s{sOFF}, s{sOFF}, {16*896}')
    prog(28, 0)
    a.label('L_ld2_done')
    stamp(6)
    dump_stamps(7)
    a('s_endpgm')

    a.label('L_loader1b')
    drain(th1, 0, 4)
    stamp(2)
    vD0, vD1 = 16, 17
    a(f'v_and_b32 v8, 15, v{vLANE}')
    a(f'v_lshlrev_b32 v9, 1, v{vG}')
    a('v_xor_b32 v8, v8, v9')
    a('v_lshlrev_b32 v8, 4, v8')
    a(f'v_mul_u32_u24 v9, 3584, v{vG}')
    a(f'v_add_u32 v{vD0}, v8, v9')
    a('v_xor_b32 v8, 128, v8')
    a(f'v_add_u32 v{vD1}, v8, v9')
    a('s_waitcnt lgkmcnt(0)')
    a(f's_add_u32 s{sTAG32}, s{sEP}, 1')
    sexp(sT0, [(sI, 128)], WS_SNC)
    a(f'v_and_b32 v37, 7, v{vLANE}')
    a(f'v_lshl_add_u32 v37, v37, 18, s{sT0}')
    wait_all(W_FREE, slp=1)
    sentinel_poll(37, 0xff)
    stamp(3)
    a(f'v_subrev_u32 v{vCNT}, {th2}, v{vCNT}')
    a(f's_xor_b32 s{sGI}, s{sU}, 64')
    a(f's_cmp_lt_u32 s{sGI}, 98')
    a('s_cbranch_scc0 L_ld_nogu')
    a(f's_mul_i32 s{sT0}, s{sGI}, 9363')
    a(f's_lshr_b32 s{sT0}, s{sT0}, 16')
    for q in range(98): assert (q * 9363) >> 16 == q // 7
    a(f's_mul_i32 s{sT2}, s{sT0}, 7')
    a(f's_sub_u32 s{sT2}, s{sGI}, s{sT2}')
    a(f's_mul_i32 s{sT2}, s{sT2}, {64*3584}')
    a(f's_lshl_b32 s{sT0}, s{sT0}, 8')
    a(f's_add_u32 s{sT2}, s{sT2}, s{sT0}')
    a(f's_mov_b32 m0, {L1_GU}')
    for base in (18, 20):
        a(f's_mov_b32 s{sOFF}, s{sT2}')
        srd(base, 1605632)
        run([(vD0, 4 * 3584), (vD1, 4 * 3584)] * 2, 16, th2)
    a('s_branch L_ld_fdone')
    a.label('L_ld_nogu')
    def unit896(nblk, step):
        for k in range(nblk):
            a(f'v_xor_b32 v{vD0}, {(k & 3) << 5}, v{vL16}')
            a(f'v_add_u32 v{vD1}, 4096, v{vD0}')
            for i in range(4): LD(vD0, 1024 * i)
            a('s_add_u32 m0, m0, 4096')
            for i in range(3): LD(vD1, 1024 * i)
            a('s_add_u32 m0, m0, 3072')
            st = step(k)
            a(f's_add_u32 s{sOFF}, s{sOFF}, {st}' if st >= 0 else f's_sub_u32 s{sOFF}, s{sOFF}, {-st}')
            prog(7, th2)
    a.label('L_ld_fdone')
    srd(12, 8388608)
    a(f's_mov_b32 s{sOFF}, s{sT3}')
    a(f's_mov_b32 m0, {L1_WUK}')
    a(f's_mov_b32 s{sT2}, 0')
    a.label('L_ld_uv')
    a(f'v_xor_b32 v{vD0}, s{sT2}, v{vA[0]}')
    run([(vD0, 16384)] * 8, 8, th2)
    a(f's_add_u32 s{sT2}, s{sT2}, 32')
    a(f's_cmp_lg_u32 s{sT2}, 256')
    a('s_cbranch_scc1 L_ld_uv')
    srd(14, 3670016)
    a(f's_bfe_u32 s{sT0}, s{sI}, 0x20001')
    a(f's_and_b32 s{sT2}, s{sI}, 1')
    sexp(sOFF, [(sH, 256 * 896), (sT0, 64 * 896), (sT2, 8 * 896)])
    a(f's_mov_b32 m0, {L1_WO}')
    if o['wo2']:
        drain(th2, 0, 4)
        stamp(5)
        wait_all(W_H3, slp=1)
        a(f'v_subrev_u32 v{vCNT}, {th2}, v{vCNT}')
    unit896(4, lambda k: 16 * 896)
    stamp(4)
    if o['wo2']: drain(th2, 0, th2)
    else: drain(th2, 0, 4)
    stamp(6)
    a(f's_cmp_lt_u32 s{sU}, 64')
    a('s_cbranch_scc1 L_fdone')
    a('s_setprio 0')
    lane_consts()
    tags()
    a(f's_bfe_u32 s{sT0}, s{sU}, 0x20004')
    a(f's_bfe_u32 s{sT2}, s{sU}, 0x10003')
    a(f's_bfe_u32 s{sT3}, s{sU}, 0x10002')
    sexp(sCNT, [(sT0, 224), (sT2, 128), (sT3, 896)])
    a(f's_and_b32 s{sT0}, s{sU}, 3')
    a(f's_lshl_b32 s{sT0}, s{sT0}, 3')
    a(f's_add_u32 s{sCNT}, s{sCNT}, s{sT0}')
    a(f'v_lshlrev_b32 v92, 2, v{vC4}')
    a(f'v_and_b32 v9, 3, v{vROW}')
    a('v_lshl_add_u32 v92, v9, 1, v92')
    a(f'v_add_u32 v92, s{sCNT}, v92')
    a('v_min_u32 v93, 1790, v92')
    a('global_load_ushort v94, v93, s[4:5]')
    sexp(sT0, [(sX8, BLK), (sI, 4096)], WS_FP - 8 * 4096)
    a(f'v_add_u32 v80, s{sT0}, v{vL16}')
    a(f'v_add_u32 v81, {L1_FIN + 256}, v{vL16}')
    a(f'v_lshlrev_b32 v82, 2, v{vL15}')
    a(f'v_add_u32 v82, {L1_FIN}, v82')
    a(f's_cmp_eq_u32 s{sT2}, 0')
    a(f's_cselect_b32 s{sT3}, -1, 0x7777')
    a(f's_and_b32 s{sT3}, s{sT3}, 0xffff')
    wait_w0(W_H4)
    stamp(11)
    L = loop_head2('L_hf2', slp=2)
    for i in range(4): a(f'v_mov_b32 v{44+i}, v{vTAG}')
    for i in range(4):
        if i == 3: setexec(0xffffffff)
        a(f'global_load_dwordx4 v[{32+4*i}:{32+4*i+3}], v80, s[28:29] offset:{1024*i} sc1')
    setexec(-1)
    a('s_waitcnt vmcnt(0)')
    untag(range(32, 48), 48)
    a(f's_cbranch_vccnz {L}')
    stamp(12)
    for i in range(0, 4, 2):
        a(f'v_pk_add_f32 v[{32+i}:{33+i}], v[{32+i}:{33+i}], v[{36+i}:{37+i}]')
        a(f'v_pk_add_f32 v[{40+i}:{41+i}], v[{40+i}:{41+i}], v[{44+i}:{45+i}]')
    for i in range(0, 4, 2): a(f'v_pk_add_f32 v[{32+i}:{33+i}], v[{32+i}:{33+i}], v[{40+i}:{41+i}]')
    allred_row([32, 33, 34, 35], 'v_add_f32', shifts=(4, 8))
    allred_swap([32, 33, 34, 35], [36, 37, 38, 39], 'v_add_f32', 16)
    allred_swap([32, 33, 34, 35], [36, 37, 38, 39], 'v_add_f32', 32)
    setexec(15)
    a('ds_write_b128 v81, v[32:35]')
    setexec(-1)
    a('ds_read_b32 v40, v82 offset:256')
    a('s_waitcnt lgkmcnt(0)')
    bf16r(40, 40)
    a(f'v_mul_f32 v41, {f32(-LOG2E)}, v40')
    a('v_exp_f32 v41, v41')
    a('v_add_f32 v41, 1.0, v41')
    a('v_rcp_f32 v41, v41')
    a('v_mul_f32 v40, v40, v41')
    bf16r(40, 40)
    a('v_lshlrev_b32 v94, 16, v94')
    stamp(13)
    wait_all(W_FIN, extra=[f'ds_read_b32 v{32+i}, v82 offset:{64*i}' for i in range(4)])
    a('s_waitcnt lgkmcnt(0)')
    a('v_add_f32 v32, v32, v33')
    a('v_add_f32 v34, v34, v35')
    a('v_add_f32 v32, v32, v34')
    bf16r(32, 32)
    a('v_mul_f32 v32, v32, v40')
    bf16r(32, 32)
    a('v_add_f32 v32, v32, v94')
    a('v_cvt_pk_bf16_f32 v32, v32, v32')
    a(f's_mov_b32 exec_lo, s{sT3}')
    a('s_mov_b32 exec_hi, 0')
    a('global_store_short v92, v32, s[24:25]')
    a(f's_cmp_lg_u32 s{sU}, 64')
    a('s_cbranch_scc1 L_fdone')
    a(f'v_mov_b32 v33, s{sTAG32}')
    a('v_mov_b32 v34, 0')
    setexec(1)
    a('global_store_dword v34, v33, s[28:29] sc1')
    a.label('L_fdone')
    stamp(10)
    dump_stamps(14)
    a('s_endpgm')
    flush_tails()

    a.label('L_end')
    a('s_endpgm')
    a.label('L_codeend')
    a.hazard_pass()
    hdr = open('recurrent_scan__compressed_kv_cla__geglu_ffn__decode.s.ref').read().split('; Override')[0]
    return hdr + f"""; @launch grid=(256,1,1) block=({64*NW},1,1) lds={LDS_BYTES}
.amdgcn_target "amdgcn-amd-amdhsa--gfx950"
.text
.globl {KN}
.p2align 12
.p2align 8
.type {KN},@function
{KN}:
{a.text()}.section .rodata,"a"
.p2align 6
.amdhsa_kernel {KN}
  .amdhsa_next_free_vgpr 256
  .amdhsa_next_free_sgpr 102
  .amdhsa_accum_offset 256
  .amdhsa_group_segment_fixed_size 0
  .amdhsa_kernarg_size 104
  .amdhsa_user_sgpr_count 2
  .amdhsa_user_sgpr_kernarg_segment_ptr 1
  .amdhsa_system_sgpr_workgroup_id_x 1
.end_amdhsa_kernel
"""

if __name__ == '__main__':
    out = sys.argv[1]
    kw = {}
    for t in sys.argv[2:]:
        k, v = t.split('=')
        kw[k] = int(v)
    open(out, 'w').write(gen(**kw))
```

```python
import sys, math, struct
from asmgen import Asm

KN = 'recurrent_scan__compressed_kv_cla__geglu_ffn__decode_kernel'
NW = 5
BLK = 0x40000
WS_Q1 = 0x1000
WS_QA = WS_Q1 + 0x8000
WS_ST = WS_QA + 0x4000
WS_SN2 = WS_ST + 0x1000
WS_XID = WS_SN2 + 0x800
WS_SN3 = WS_XID + 0x800
WS_XI1 = WS_SN3 + 0x800
WS_SNC = WS_XI1 + 0x800
WS_GU = WS_SNC + 0x800
WS_FP = WS_GU + 7 * 4096
WS_SP = WS_FP + 8 * 4096
WS_CX = WS_SP + 8 * 8192
assert WS_CX + 0x8000 <= BLK
Q1L = 0x200000 + 0x20000 - WS_Q1
WS_SX = 0x200000
WS_OW = 0x400000
WS_TS = 0x600000
L2_CKV = 0
L2_QF = 131072
L2_P = L2_QF + 16384
L2_MW = L2_P + 4096
L2_MX = L2_MW + 1024
L1_WUK = 0
L1_WO = 65536
L1_GU = 94208
L1_OB = L1_GU
L1_OC = L1_OB + 16384
L1_Q = L1_GU + 57344
L1_WT = L1_Q + 1024
L1_FIN = L1_WT + 128
L_XN = 159744
L_FL = L_XN + 1792
LDS_BYTES = 163840
assert L1_FIN + 512 <= L_XN and L_FL + 64 <= LDS_BYTES and L_FL % 16 == 0

LOG2E = 1.4426950408889634
def f32(x): return '0x%08x' % struct.unpack('<I', struct.pack('<f', x))[0]
A_QA, A_P, A_O = range(1, 4)
W_Q, W_FREE, W_S3, W_H3, W_WT, W_OC, W_H4, W_FIN = range(1, 9)

DEF = dict(dbg=0, nt=1, local=1, tha=4, thb=40, nslow=16, nsig=80, h2at=112, h1at=88, th1=40, th2=40,
           sn3at=1, sn5=0, wo2=1, wdtrig=3, probe=-1, pg=0, pw=0, pmin=0)

def gen(**kw):
    o = dict(DEF); o.update(kw)
    dbg = o['dbg']
    a = Asm()
    NT = ' nt' if o['nt'] else ''
    sWAVE, sX8, sI, sH, sB3, sKC, sCH, sDQ, sMH, sTAG, sMASK = 3, 30, 31, 32, 33, 34, 35, 36, 37, 38, 39
    SRD = 40
    sOFF, sCNT, sU, sGI, sW, sF, sBUD, sT0, sT1, sT2, sT3, sEP = 44, 45, 46, 47, 48, 49, 50, 51, 52, 53, 54, 55
    sTAG32, sSC, sTS, sHL, sLOC = 58, 59, 60, 100, 101
    vLANE, vL15, vG, vTAG, vSTG, vFL, vL16, vT = 1, 2, 3, 4, 5, 6, 7, 8
    vFL4 = 14
    vROW, vC4 = 26, 27

    def stamp(k):
        if dbg: a(f's_memrealtime s[{sTS+2*k}:{sTS+2*k+1}]')
    def dump_stamps(n):
        if not dbg: return
        a('s_waitcnt lgkmcnt(0)')
        a('s_mov_b64 exec, 1')
        a(f's_mul_i32 s{sT0}, s2, 6')
        a(f's_add_u32 s{sT0}, s{sT0}, s{sWAVE}')
        a(f's_lshl_b32 s{sT0}, s{sT0}, 7')
        a(f's_add_u32 s{sT0}, s{sT0}, {WS_TS}')
        a(f'v_mov_b32 v8, s{sT0}')
        for k in range(n):
            a(f'v_mov_b32 v9, s{sTS+2*k}')
            a(f'global_store_dword v8, v9, s[28:29] offset:{4*k} sc1')
    def setexec(mask):
        if mask == -1: a('s_mov_b64 exec, -1')
        elif 0 <= mask <= 64: a(f's_mov_b64 exec, {mask}')
        elif mask < (1 << 31): a(f's_mov_b64 exec, 0x{mask:x}')
        else:
            a(f's_mov_b32 exec_lo, 0x{mask & 0xffffffff:x}')
            a(f's_mov_b32 exec_hi, 0x{mask >> 32:x}')
    def loop_head(base, slp=0):
        L = a.newlabel(base)
        a(f's_branch {L}_f')
        a.label(L)
        a(f's_sub_u32 s{sBUD}, s{sBUD}, 1')
        a('s_cbranch_scc1 L_end')
        if slp: a(f's_sleep {slp}')
        a.label(L + '_f')
        return L
    tails = []
    def loop_head2(base, slp=0):
        L = a.newlabel(base)
        a.label(L + '_f')
        tails.append((L, slp))
        return L
    def flush_tails():
        for L, slp in tails:
            a.label(L)
            a(f's_sub_u32 s{sBUD}, s{sBUD}, 1')
            a('s_cbranch_scc1 L_end')
            if slp: a(f's_sleep {slp}')
            a(f's_branch {L}_f')
        tails.clear()
    def sexp(dst, terms, const=0):
        first = True
        for reg, f in terms:
            tgt = dst if first else sT1
            if f & (f - 1) == 0: a(f's_lshl_b32 s{tgt}, s{reg}, {int(math.log2(f))}')
            else: a(f's_mul_i32 s{tgt}, s{reg}, {f}')
            if not first: a(f's_add_u32 s{dst}, s{dst}, s{sT1}')
            first = False
        if const: a(f's_add_u32 s{dst}, s{dst}, {const}')
    def wait_flag(addr, off, thr, extra=None, slp=0):
        L = a.newlabel('L_wf')
        a.label(L)
        a(f'ds_read_b32 v{vT}, v{addr} offset:{off}')
        n = 0
        if extra:
            for e in extra: a(e)
            n = len(extra)
        a(f's_sub_u32 s{sBUD}, s{sBUD}, 1')
        a('s_cbranch_scc1 L_end')
        if slp: a(f's_sleep {slp}')
        a(f's_waitcnt lgkmcnt({min(n, 15)})')
        a(f'v_cmp_gt_i32 vcc, {thr}, v{vT}')
        a(f's_cbranch_vccnz {L}')
    def wait_prog(thr, slp=0): wait_flag(vFL, 0, thr, None, slp)
    def wait_all(k, extra=None, slp=0): wait_flag(vFL4, 0, k, extra, slp)
    def wait_w0(k, extra=None): wait_flag(vFL, 16, k, extra)
    def stage(k):
        a(f'v_mov_b32 v{vT+4}, {k}')
        a(f'ds_write_b32 v{vSTG}, v{vT+4}')
    def untag(regs, acc):
        for r in regs: a(f'v_xor_b32 v{r}, v{r}, v{vTAG}')
        rs = list(regs)
        a(f'v_or3_b32 v{acc}, v{rs[0]}, v{rs[1]}, v{rs[2]}')
        i = 3
        while i < len(rs):
            if i + 1 < len(rs):
                a(f'v_or3_b32 v{acc}, v{acc}, v{rs[i]}, v{rs[i+1]}'); i += 2
            else:
                a(f'v_or_b32 v{acc}, v{acc}, v{rs[i]}'); i += 1
        a(f'v_and_b32 v{acc}, s{sMASK}, v{acc}')
        a(f'v_cmp_ne_u32 vcc, 0, v{acc}')
    def sentinel_poll(vaddr, mask):
        setexec(mask)
        L = a.newlabel('L_sn')
        a.label(L)
        a(f'global_load_dword v{vT+5}, v{vaddr}, s[28:29] sc1')
        a(f's_sub_u32 s{sBUD}, s{sBUD}, 1')
        a('s_cbranch_scc1 L_end')
        a('s_waitcnt vmcnt(0)')
        a(f'v_cmp_ne_u32 vcc, s{sTAG32}, v{vT+5}')
        a(f's_cbranch_vccnz {L}')
        setexec(-1)
    def sentinel_addr(reg, base):
        sexp(sT0, [(sX8, BLK), (sI, 128)], base)
        a(f'v_add_u32 v{reg}, s{sT0}, v{vL16}')
    def sentinel_put(reg, wave=None):
        L = None
        if wave is not None:
            L = a.newlabel('L_np')
            a(f's_cmp_lg_u32 s{sW}, {wave}')
            a(f's_cbranch_scc1 {L}')
        a(f'v_mov_b32 v{vT}, s{sTAG32}')
        setexec(15)
        a(f'global_store_dwordx4 v{reg}, v[{vT}:{vT+3}], s[28:29] sc1')
        setexec(-1)
        if L: a.label(L)
    def store_flavoured(stores, tag):
        a(f's_cmp_lg_u32 s{sLOC}, 0')
        a(f's_cbranch_scc1 L_{tag}l')
        for x in stores: a(x + ' sc1')
        a(f's_branch L_{tag}d')
        a.label(f'L_{tag}l')
        for x in stores: a(x)
        a.label(f'L_{tag}d')
    def bf16r(dst, src):
        a(f'v_cvt_pk_bf16_f32 v{dst}, v{src}, v{src}')
        a(f'v_and_b32 v{dst}, 0xffff0000, v{dst}')
    def allred_row(regs, op, shifts=(8, 4, 2, 1)):
        for sh in shifts:
            for r in regs:
                a(f'{op}_dpp v{r}, v{r}, v{r} row_ror:{sh} row_mask:0xf bank_mask:0xf')
    def allred_swap(regs, tmps, op, which):
        for r, t in zip(regs, tmps): a(f'v_mov_b32 v{t}, v{r}')
        for r, t in zip(regs, tmps): a(f'v_permlane{which}_swap_b32 v{r}, v{t}')
        for r, t in zip(regs, tmps): a(f'{op} v{r}, v{r}, v{t}')
    def mfs(d, x, y, c):
        cc = '0' if c is None else f'v[{c}:{c+3}]'
        return f'v_mfma_f32_16x16x32_bf16 v[{d}:{d+3}], v[{x}:{x+3}], v[{y}:{y+3}], {cc}'
    def MF(d, x, y, c): a(mfs(d, x, y, c))
    def trs(r, addr, off): return f'ds_read_b64_tr_b16 v[{r}:{r+1}], v{addr} offset:{off}'
    def TR(r, addr, off): a(trs(r, addr, off))
    def lane_consts():
        a(f'v_and_b32 v{vL15}, 15, v{vLANE}')
        a(f'v_lshrrev_b32 v{vROW}, 2, v{vLANE}')
        a(f'v_and_b32 v{vC4}, 3, v{vLANE}')
        a(f'v_lshlrev_b32 v{vC4}, 3, v{vC4}')
        a(f's_mov_b32 s{sMASK}, 0xfff')
    def tags():
        a(f's_add_u32 s{sTAG32}, s{sEP}, 1')
        a(f's_and_b32 s{sTAG}, s{sTAG32}, 0xfff')
        a(f'v_mov_b32 v{vTAG}, s{sTAG}')
    def tag8(dst):
        a(f's_lshr_b32 s{dst}, s{sTAG32}, 4')
        a(f's_and_b32 s{dst}, s{dst}, 3')
        a(f's_lshl_b32 s{dst}, s{dst}, 6')
        a(f's_not_b32 s{sT1}, s{sTAG32}')
        a(f's_and_b32 s{sT1}, s{sT1}, 3')
        a(f's_lshl_b32 s{sT1}, s{sT1}, 4')
        a(f's_or_b32 s{dst}, s{dst}, s{sT1}')
        a(f's_and_b32 s{sT1}, s{sTAG32}, 15')
        a(f's_or_b32 s{dst}, s{dst}, s{sT1}')

    M_LN = 0x0fffffff0fffffff
    X = 16
    stamp(0)
    a('s_load_dwordx16 s[4:19], s[0:1], 0')
    a('s_load_dwordx8 s[20:27], s[0:1], 64')
    a('s_load_dwordx2 s[28:29], s[0:1], 96')
    a('s_cmp_ge_u32 s2, 256')
    a('s_cbranch_scc1 L_end')
    a('s_getpc_b64 s[56:57]')
    a.label('L_pc')
    a('v_lshrrev_b32 v8, 6, v0')
    a(f's_lshr_b32 s{sI}, s2, 3')
    a(f's_mul_i32 s{sT0}, s{sI}, {128*NW}')
    a(f'v_lshl_add_u32 v9, v8, 7, s{sT0}')
    a('v_min_u32 v9, L_codeend-L_pc-4, v9')
    a('global_load_dword v250, v9, s[56:57]')
    a(f'v_and_b32 v{vLANE}, 63, v0')
    a(f'v_readfirstlane_b32 s{sWAVE}, v8')
    a(f's_and_b32 s{sX8}, s2, 7')
    a(f's_and_b32 s{sI}, s{sI}, 15')
    a(f's_and_b32 s{sU}, s2, 127')
    a(f's_lshr_b32 s{sT0}, s{sI}, 3')
    a(f's_lshl_b32 s{sH}, s{sX8}, 1')
    a(f's_add_u32 s{sH}, s{sH}, s{sT0}')
    a(f's_and_b32 s{sDQ}, s{sI}, 3')
    a(f's_bfe_u32 s{sMH}, s{sI}, 0x10002')
    a(f's_mov_b32 s{sBUD}, 0x40000')
    a(f'v_lshrrev_b32 v{vG}, 4, v{vLANE}')
    a(f'v_mov_b32 v{vFL}, {L_FL}')
    a(f'v_lshlrev_b32 v{vL16}, 4, v{vLANE}')
    a(f'v_and_b32 v{vFL4}, 3, v{vLANE}')
    a(f'v_lshlrev_b32 v{vFL4}, 2, v{vFL4}')
    a(f'v_add_u32 v{vFL4}, {L_FL + 16}, v{vFL4}')
    a(f's_cmp_eq_u32 s{sWAVE}, 0')
    a('s_cbranch_scc1 L_loader')
    a(f's_sub_u32 s{sW}, s{sWAVE}, 1')
    a(f's_lshl_b32 s{sT0}, s{sW}, 2')
    a(f's_add_u32 s{sT0}, s{sT0}, {L_FL + 16}')
    a(f'v_mov_b32 v{vSTG}, s{sT0}')
    a('v_mov_b32 v8, 0')
    a(f'ds_write_b32 v{vSTG}, v8')
    a(f'v_lshrrev_b32 v9, 5, v{vLANE}')
    a('v_mul_u32_u24 v9, 896, v9')
    a(f'v_and_b32 v10, 31, v{vLANE}')
    a('v_lshl_add_u32 v10, v10, 5, v9')
    a(f's_and_b32 s{sHL}, s{sH}, 7')
    a(f's_lshr_b32 s{sB3}, s{sX8}, 2')
    a('s_cmp_ge_u32 s2, 128')
    a('s_waitcnt lgkmcnt(0)')
    a(f's_load_dword s{sEP}, s[28:29], 0')
    a('s_cbranch_scc0 L_g2bar')
    a('global_load_ushort v24, v9, s[4:5]')
    setexec(M_LN)
    a(f'global_load_dwordx4 v[{X}:{X+3}], v10, s[4:5]')
    a(f'global_load_dwordx4 v[{X+4}:{X+7}], v10, s[4:5] offset:16')
    setexec(-1)
    a('s_barrier')
    a('s_branch L_comp1')
    a.label('L_g2bar')
    a('s_barrier')
    a('s_branch L_comp2')

    a.label('L_loader')
    a('s_setprio 3')
    vC, vCNT, vPUB = 16, 18, 19
    vA = list(range(20, 28))
    a(f'v_mov_b32 v{vPUB}, 0')
    a(f'ds_write_b32 v{vFL}, v{vPUB}')
    a(f's_mov_b32 s{SRD+3}, 0x20000')
    a('s_cmp_lt_u32 s2, 128')
    a('s_cbranch_scc1 L_loader2')
    def LD(v, off=0):
        a(f'buffer_load_dwordx4 v{v}, s[{SRD}:{SRD+3}], s{sOFF} offen' + (f' offset:{off}' if off else '') + f'{NT} lds')
    def prog(g, th):
        a(f'v_add_u32 v{vCNT}, {g}, v{vCNT}')
        a(f'v_max_i32 v{vPUB}, v{vPUB}, v{vCNT}')
        a(f's_waitcnt vmcnt({th})')
        a(f'ds_write_b32 v{vFL}, v{vPUB}')
    def run(seq, n, th, grp=4):
        assert n % len(seq) == 0 and len(seq) % grp == 0
        L = a.newlabel('L_ld')
        if n > len(seq):
            a(f's_mov_b32 s{sCNT}, {n // len(seq)}')
            a.label(L)
        for k, (v, st) in enumerate(seq):
            LD(v)
            a('s_add_u32 m0, m0, 1024')
            if st: a(f's_add_u32 s{sOFF}, s{sOFF}, {st}')
            if k % grp == grp - 1: prog(grp, th)
        if n > len(seq):
            a(f's_sub_u32 s{sCNT}, s{sCNT}, 1')
            a(f's_cmp_lg_u32 s{sCNT}, 0')
            a(f's_cbranch_scc1 {L}')
    def drain(frm, to=0, gran=4):
        k = frm
        while k > to:
            d = min(gran, k - to); k -= d
            prog(d, k)
    def srd(base, size):
        a(f's_mov_b32 s{SRD}, s{base}')
        a(f's_mov_b32 s{SRD+1}, s{base+1}')
        a(f's_mov_b32 s{SRD+2}, {size}')
    tha, thb, th1, th2 = o['tha'], o['thb'], o['th1'], o['th2']
    a(f'v_lshrrev_b32 v8, 5, v{vLANE}')
    a(f'v_and_b32 v9, 31, v{vLANE}')
    a('v_lshlrev_b32 v9, 4, v9')
    a(f'v_lshl_add_u32 v{vA[0]}, v8, 13, v9')
    a('v_lshlrev_b32 v8, 5, v8')
    a(f'v_xor_b32 v28, v8, v{vA[0]}')
    for k in range(1, 4): a(f'v_xor_b32 v{28+k}, {k << 6}, v28')
    a(f's_and_b32 s{sT2}, s{sI}, 7')
    a(f's_xor_b32 s{sT0}, s{sH}, 1')
    a(f's_lshl_b32 s{sT0}, s{sT0}, 9')
    a(f's_lshl_b32 s{sOFF}, s{sT2}, 19')
    a(f's_add_u32 s{sOFF}, s{sOFF}, s{sT0}')
    a(f's_mov_b32 m0, {L1_GU}')
    a(f'v_mov_b32 v{vCNT}, {-th1}')
    a('s_waitcnt lgkmcnt(0)')
    srd(8, 3670016)
    a(f's_load_dword s{sEP}, s[28:29], 0')
    a('s_barrier')
    stamp(7)
    run([(28 + k, 16384) for k in range(4)], 32, th1)
    stamp(8)
    for k in range(1, 8): a(f'v_xor_b32 v{vA[k]}, {k << 5}, v{vA[0]}')
    a(f's_lshl_b32 s{sT3}, s{sT2}, 20')
    a(f's_lshl_b32 s{sT0}, s{sH}, 9')
    a(f's_add_u32 s{sT3}, s{sT3}, s{sT0}')
    a(f's_mov_b32 s{sOFF}, s{sT3}')
    a(f's_mov_b32 m0, {L1_WUK}')
    srd(10, 8388608)
    stamp(9)
    run([(vA[k >> 1], 16384) for k in range(16)], 64, th1)
    stamp(1)
    a('s_branch L_loader1b')
    a.label('L_loader2')
    a('s_waitcnt lgkmcnt(0)')
    a(f's_load_dword s{sEP}, s[28:29], 0')
    a('s_barrier')
    a('s_branch L_loader2b')

    a.label('L_comp1')
    stamp(1)
    lane_consts()
    vA1, vB1, vXB = 29, 30, 31
    a(f'v_and_b32 v8, 7, v{vROW}')
    a(f'v_lshl_add_u32 v9, v{vROW}, 9, v{vC4}')
    a(f'v_add_u32 v9, {L1_GU}, v9')
    for t in range(4):
        a(f's_lshl_b32 s{sT0}, s{sW}, 2')
        a(f's_add_u32 s{sT0}, s{sT0}, {t}')
        a(f'v_xor_b32 v11, s{sT0}, v8')
        a(f'v_lshl_add_u32 v{84+t}, v11, 5, v9')
    a(f'v_bfe_u32 v28, v{vLANE}, 2, 1')
    a(f'v_mul_u32_u24 v{vXB}, 896, v28')
    a(f'v_lshl_add_u32 v{vXB}, v{vG}, 3, v{vXB}')
    a(f'v_add_u32 v{vXB}, {L_XN}, v{vXB}')
    a(f's_and_b32 s{sT3}, s{sI}, 7')
    a(f's_lshl_b32 s{sT0}, s{sT3}, 7')
    a(f'v_add_u32 v{vB1}, s{sT0}, v{vXB}')
    a(f's_xor_b32 s{sT2}, s{sHL}, 1')
    sexp(sT0, [(sT2, BLK), (sB3, 16384), (sW, 4096), (sT3, 512)], WS_Q1)
    a(f'v_add_u32 v54, s{sT0}, v{vL16}')
    a(f'v_add_u32 v55, {Q1L}, v54')
    setexec(0xffffffff)
    a('global_load_dwordx4 v[244:247], v55, s[28:29] sc1')
    setexec(-1)
    a(f'v_add_u32 v25, {L_XN}, v10')
    for i in range(4): a(f'v_mov_b32 v{48+i}, 0')
    U = 32
    a('s_waitcnt vmcnt(1) lgkmcnt(0)')
    stamp(11)
    tags()
    a('v_lshlrev_b32 v24, 16, v24')
    for i in range(8):
        a(f'v_lshlrev_b32 v{U+2*i}, 16, v{X+i}')
        a(f'v_and_b32 v{U+2*i+1}, 0xffff0000, v{X+i}')
    setexec(M_LN)
    for i in range(8):
        t = 52 if i & 1 else 56
        a(f'v_pk_add_f32 v[{t}:{t+1}], v[{U+2*i}:{U+2*i+1}], v[24:25] op_sel_hi:[1,0] neg_lo:[0,1] neg_hi:[0,1]')
        if i > 0:
            tp_ = 52 if (i - 1) & 1 else 56
            a(f'v_pk_add_f32 v[48:49], v[48:49], v[{tp_}:{tp_+1}]')
            a(f'v_pk_fma_f32 v[50:51], v[{tp_}:{tp_+1}], v[{tp_}:{tp_+1}], v[50:51]')
    a('v_pk_add_f32 v[48:49], v[48:49], v[52:53]')
    a('v_pk_fma_f32 v[50:51], v[52:53], v[52:53], v[50:51]')
    setexec(-1)
    a('v_add_f32 v48, v48, v49')
    a('v_add_f32 v50, v50, v51')
    allred_row([48, 50], 'v_add_f32')
    allred_swap([48, 50], [49, 51], 'v_add_f32', 16)
    a(f'v_mul_f32 v48, {f32(1.0/448)}, v48')
    a(f'v_mul_f32 v50, {f32(1.0/448)}, v50')
    a('v_fma_f32 v50, -v48, v48, v50')
    a('v_add_f32 v48, v48, v24')
    a('v_max_f32 v50, 0, v50')
    bf16r(48, 48)
    bf16r(50, 50)
    a(f'v_add_f32 v50, {f32(1e-5)}, v50')
    bf16r(50, 50)
    a('v_sqrt_f32 v50, v50')
    for i in range(8):
        a(f'v_pk_add_f32 v[{U+2*i}:{U+2*i+1}], v[{U+2*i}:{U+2*i+1}], v[48:49] op_sel_hi:[1,0] neg_lo:[0,1] neg_hi:[0,1]')
    bf16r(50, 50)
    a('v_rcp_f32 v50, v50')
    for i in range(8): a(f'v_cvt_pk_bf16_f32 v{X+i}, v{U+2*i}, v{U+2*i+1}')
    for i in range(8):
        a(f'v_lshlrev_b32 v{U+2*i}, 16, v{X+i}')
        a(f'v_and_b32 v{U+2*i+1}, 0xffff0000, v{X+i}')
    for i in range(8):
        a(f'v_pk_mul_f32 v[{U+2*i}:{U+2*i+1}], v[{U+2*i}:{U+2*i+1}], v[50:51] op_sel_hi:[1,0]')
    for i in range(8): a(f'v_cvt_pk_bf16_f32 v{X+i}, v{U+2*i}, v{U+2*i+1}')
    setexec(M_LN)
    a(f'ds_write_b128 v25, v[{X}:{X+3}]')
    a(f'ds_write_b128 v25, v[{X+4}:{X+7}] offset:16')
    setexec(-1)
    a(f's_cmp_eq_u32 s{sT3}, 7')
    a('s_cbranch_scc1 L_nop1')
    XB = 64
    for s in range(2):
        a(f'ds_read2_b64 v[{XB+4*s}:{XB+4*s+3}], v{vB1} offset0:{8*s} offset1:{8*s+4}')
    stamp(12)
    wait_prog(32)
    WA = 96; D = 32
    for s in range(2):
        for t in range(4):
            TR(WA + 16 * s + 4 * t, 84 + t, (32 * s) * 512)
            TR(WA + 16 * s + 4 * t + 2, 84 + t, (32 * s + 16) * 512)
    for s in range(2):
        for t in range(4):
            a(f's_waitcnt lgkmcnt({14 - 8 * s - 2 * t})')
            MF(D + 4 * t, XB + 4 * s, WA + 16 * s + 4 * t, None if s == 0 else D + 4 * t)
    for t in range(4): a(f'v_bfi_b32 v{48+t}, s{sMASK}, v{vTAG}, v{D+4*t}')
    setexec(0xffffffff)
    a('global_store_dwordx4 v55, v[48:51], s[28:29]')
    setexec(-1)
    a.label('L_nop1')
    stamp(10)
    a(f's_xor_b32 s{sGI}, s{sU}, 64')
    a(f's_cmp_lt_u32 s{sGI}, 98')
    a(f's_cselect_b32 s{sF}, 32, 0')
    sexp(sT0, [(sHL, BLK), (sB3, 16384), (sW, 4096)], WS_Q1)
    a(f'v_add_u32 v57, s{sT0}, v{vL16}')
    a(f'v_add_u32 v55, {Q1L}, v57')
    a(f's_mov_b32 s{sCNT}, {64 if o["local"] else 1}')
    sexp(sT0, [(sW, 128)], L1_Q)
    a(f'v_and_b32 v56, 1, v{vG}')
    a('v_lshlrev_b32 v56, 9, v56')
    a(f'v_lshl_add_u32 v56, v{vL15}, 1, v56')
    a(f'v_add_u32 v56, s{sT0}, v56')
    a(f'v_and_b32 v8, 7, v{vLANE}')
    a(f'v_bfe_u32 v9, v{vLANE}, 3, 1')
    a('v_lshlrev_b32 v9, 10, v9')
    a('v_lshl_add_u32 v10, v8, 11, v9')
    a(f's_lshl_b32 s{sT0}, s{sW}, 14')
    a(f'v_add_u32 v10, s{sT0}, v10')
    a('v_lshlrev_b32 v8, 1, v8')
    for s3 in range(4):
        a(f'v_add_u32 v9, {4*s3}, v{vG}')
        a('v_xor_b32 v9, v9, v8')
        a(f'v_lshl_add_u32 v{84+s3}, v9, 4, v10')
    a('v_lshlrev_b32 v88, 9, v28')
    a(f'v_lshl_add_u32 v88, v{vG}, 4, v88')
    a(f'v_add_u32 v88, {L1_Q}, v88')
    a(f's_and_b32 s{sT2}, s{sI}, 7')
    sexp(sT0, [(sHL, BLK), (sB3, 8192), (sT2, 512), (sW, 128)], WS_QA)
    a(f'v_lshlrev_b32 v89, 12, v{vG}')
    a(f'v_lshl_add_u32 v89, v{vL15}, 4, v89')
    a(f'v_add_u32 v89, s{sT0}, v89')
    sentinel_addr(90, WS_SN2)
    a(f'v_mov_b32 v70, s{sTAG32}')
    a(f'v_not_b32 v71, s{sTAG32}')
    G = 32; KA = 96; QB = 160; D = 72
    wait_prog(o['h1at'])
    stamp(2)
    L = loop_head2('L_h1')
    a(f's_sub_u32 s{sCNT}, s{sCNT}, 1')
    a(f's_cmp_lg_u32 s{sCNT}, 0')
    a('s_cbranch_scc1 L_h1k')
    a('v_mov_b32 v55, v57')
    a(f's_cmp_eq_u32 s{sT3}, 7')
    a('s_cbranch_scc1 L_h1k')
    setexec(0xffffffff)
    a('global_store_dwordx4 v54, v[48:51], s[28:29] sc1')
    setexec(-1)
    a.label('L_h1k')
    for i in range(4): a(f'v_mov_b32 v{G+12+i}, v{vTAG}')
    for i in range(4):
        if i == 3: setexec(0xffffffff)
        a(f'global_load_dwordx4 v[{G+4*i}:{G+4*i+3}], v55, s[28:29] offset:{1024*i} sc1')
    setexec(-1)
    if o['h1at'] < 96: wait_prog(96)
    for t in range(2):
        for s in range(8):
            r = KA + 32 * t + 4 * s
            a(f'ds_read_b128 v[{r}:{r+3}], v{84 + (s & 3)} offset:{t * 512 + (s >> 2) * 256}')
    a('s_waitcnt vmcnt(0)')
    untag(range(G, G + 16), 64)
    a(f's_cbranch_vccnz {L}')
    stamp(3)
    for i in range(0, 4, 2):
        a(f'v_pk_add_f32 v[{G+i}:{G+i+1}], v[{G+i}:{G+i+1}], v[{G+4+i}:{G+5+i}]')
        a(f'v_pk_add_f32 v[{G+8+i}:{G+9+i}], v[{G+8+i}:{G+9+i}], v[{G+12+i}:{G+13+i}]')
    for i in range(0, 4, 2): a(f'v_pk_add_f32 v[{G+i}:{G+i+1}], v[{G+i}:{G+i+1}], v[{G+8+i}:{G+9+i}]')
    allred_swap([G, G+1, G+2, G+3], [G+4, G+5, G+6, G+7], 'v_add_f32', 32)
    a(f'v_cvt_pk_bf16_f32 v{G}, v{G}, v{G+1}')
    a(f'v_cvt_pk_bf16_f32 v{G+1}, v{G+2}, v{G+3}')
    a(f'ds_write_b16 v56, v{G}')
    a(f'ds_write_b16_d16_hi v56, v{G} offset:32')
    a(f'ds_write_b16 v56, v{G+1} offset:64')
    a(f'ds_write_b16_d16_hi v56, v{G+1} offset:96')
    stage(W_Q)
    a(f's_cmp_eq_u32 s{sT3}, 7')
    a('s_cbranch_scc1 L_q1g')
    setexec(0xffffffff)
    a('global_store_dwordx4 v54, v[48:51], s[28:29] sc1')
    setexec(-1)
    a.label('L_q1g')
    wait_all(W_Q, extra=[f'ds_read_b128 v[{QB+4*s}:{QB+4*s+3}], v88 offset:{s * 64}' for s in range(8)])
    for s in range(8):
        a(f's_waitcnt lgkmcnt({7 - s})')
        for t in range(2): MF(D + 4 * t, QB + 4 * s, KA + 32 * t + 4 * s, None if s == 0 else D + 4 * t)
    stage(W_FREE)
    a(f'v_cvt_pk_bf16_f32 v68, v{D}, v{D+4}')
    a('v_mov_b32_dpp v69, v68 row_ror:8 row_mask:0xf bank_mask:0xf')
    setexec(0x00ff00ff)
    a('global_store_dwordx4 v89, v[68:71], s[28:29] sc1')
    setexec(-1)
    sentinel_put(90, wave=0)
    stamp(4)
    a(f's_getreg_b32 s{sLOC}, hwreg(HW_REG_XCC_ID)')
    sentinel_addr(13, WS_XI1)
    a(f'v_mov_b32 v{vT+1}, s{sLOC}')
    sentinel_put(13, wave=1)

    a(f's_mul_i32 s{sKC}, s{sGI}, 9363')
    a(f's_lshr_b32 s{sKC}, s{sKC}, 16')
    a(f's_mul_i32 s{sCH}, s{sKC}, 7')
    a(f's_sub_u32 s{sCH}, s{sGI}, s{sCH}')
    a(f's_lshl_b32 s{sT0}, s{sCH}, 7')
    a(f'v_add_u32 v{vB1}, s{sT0}, v{vXB}')
    a(f'v_and_b32 v8, 7, v{vROW}')
    a(f'v_lshl_add_u32 v9, v{vROW}, 8, v{vC4}')
    a(f's_lshr_b32 s{sT0}, s{sW}, 1')
    a(f's_lshl_b32 s{sT0}, s{sT0}, 14')
    a(f's_add_u32 s{sT0}, s{sT0}, {L1_GU}')
    a(f'v_add_u32 v9, s{sT0}, v9')
    a(f's_and_b32 s{sT3}, s{sW}, 1')
    for t in range(4):
        a(f's_lshl_b32 s{sT0}, s{sT3}, 2')
        a(f's_add_u32 s{sT0}, s{sT0}, {t}')
        a(f'v_xor_b32 v10, s{sT0}, v8')
        a(f'v_lshl_add_u32 v{72+t}, v10, 5, v9')
    a(f's_lshl_b32 s{sT0}, s{sKC}, 1')
    a(f's_add_u32 s{sT0}, s{sT0}, s{sT3}')
    a(f's_lshl_b32 s{sT0}, s{sT0}, 1')
    a(f'v_bfe_u32 v9, v{vLANE}, 3, 1')
    a(f'v_add_u32 v9, s{sT0}, v9')
    a('v_and_b32 v76, 7, v9')
    a('v_lshlrev_b32 v76, 18, v76')
    a('v_lshrrev_b32 v9, 3, v9')
    a('v_lshl_add_u32 v76, v9, 12, v76')
    a(f'v_lshl_add_u32 v76, v{vG}, 7, v76')
    a(f'v_and_b32 v9, 7, v{vLANE}')
    a('v_lshl_add_u32 v76, v9, 4, v76')
    a(f's_lshr_b32 s{sT3}, s{sW}, 1')
    sexp(sT0, [(sCH, 512), (sT3, 256)], WS_GU)
    a(f'v_add_u32 v76, s{sT0}, v76')
    a(f'v_and_b32 v8, 7, v{vROW}')
    a(f'v_lshrrev_b32 v9, 1, v{vG}')
    a('v_lshl_add_u32 v9, v8, 4, v9')
    a(f'v_lshl_add_u32 v9, v9, 9, v{vC4}')
    for t in range(4):
        a(f's_lshl_b32 s{sT0}, s{sW}, 2')
        a(f's_add_u32 s{sT0}, s{sT0}, {t}')
        a(f'v_xor_b32 v10, s{sT0}, v8')
        a(f'v_lshl_add_u32 v{84+t}, v10, 5, v9')
    sexp(sT0, [(sH, 1 << 16), (sT2, 1 << 13), (sW, 1 << 11)], WS_OW)
    a(f'v_and_b32 v9, 1, v{vG}')
    a('v_lshlrev_b32 v9, 5, v9')
    a(f'v_xor_b32 v80, v9, v{vL16}')
    a(f'v_add_u32 v80, s{sT0}, v80')
    a('v_add_u32 v81, 0x100000, v80')
    sexp(sT3, [(sW, 4096)], L1_OB)
    a(f'v_lshl_add_u32 v92, v{vROW}, 6, v{vC4}')
    a('v_add_u32 v92, v92, v9')
    a(f'v_add_u32 v92, s{sT3}, v92')
    a('v_xor_b32 v93, 32, v92')
    tag8(sT0)
    a(f'v_and_b32 v9, 7, v{vLANE}')
    a(f'v_lshrrev_b32 v20, v9, s{sT0}')
    a('v_and_b32 v20, 1, v20')
    a('v_mul_u32_u24 v20, 0x10001, v20')
    sexp(sT0, [(sMH, 256), (sH, 16)], WS_ST)
    a(f'v_lshrrev_b32 v82, 3, v{vLANE}')
    a('v_lshlrev_b32 v82, 18, v82')
    a('v_lshl_add_u32 v82, v9, 9, v82')
    a(f'v_add_u32 v82, s{sT0}, v82')
    a(f'v_lshlrev_b32 v83, 1, v{vLANE}')
    a(f'v_add_u32 v83, {L1_WT}, v83')
    a('v_lshlrev_b32 v88, 6, v28')
    a(f'v_lshl_add_u32 v88, v{vG}, 3, v88')
    a(f'v_add_u32 v88, {L1_WT}, v88')
    a(f'v_add_u32 v90, {L1_OC}, v{vL16}')
    a(f's_lshl_b32 s{sT0}, s{sW}, 10')
    a(f'v_add_u32 v89, s{sT0}, v90')
    sexp(sT0, [(sHL, BLK), (sB3, 16384), (sW, 4096), (sT2, 256)], WS_CX)
    a(f'v_bfe_u32 v10, v{vLANE}, 3, 1')
    a('v_lshlrev_b32 v91, 11, v10')
    a(f'v_lshl_add_u32 v91, v{vG}, 7, v91')
    a('v_lshl_add_u32 v91, v9, 4, v91')
    a(f'v_add_u32 v91, s{sT0}, v91')
    a(f's_lshl_b32 s{sT0}, s{sW}, 4')
    a(f'v_add_u32 v8, s{sT0}, v{vL15}')
    a('v_lshlrev_b32 v10, 1, v9')
    a(f'v_add_u32 v10, s{sMH}, v10')
    a('v_lshrrev_b32 v8, 3, v8')
    a('v_lshlrev_b32 v8, 18, v8')
    a('v_lshl_add_u32 v79, v10, 7, v8')
    a(f'v_add_u32 v79, {WS_SN3}, v79')
    WB = 48
    for i in range(0, 8, 2): a(f'v_mov_b64 v[{WB+i}:{WB+i+1}], 0')
    sexp(sT0, [(sX8, BLK), (sI, 8192), (sW, 2048)], WS_SX)
    a(f'v_add_u32 v9, s{sT0}, v{vL16}')
    a('global_load_dwordx4 v[32:35], v9, s[28:29] sc1')
    a('global_load_dwordx4 v[36:39], v9, s[28:29] offset:1024 sc1')
    setexec(0xffffffff)
    a('global_load_dwordx4 v[40:43], v91, s[28:29] sc1')
    setexec(-1)
    sexp(sT0, [(sHL, BLK), (sB3, 16384), (sT2, 2048)], WS_CX)
    a(f'v_add_u32 v15, s{sT0}, v{vL16}')
    a('v_lshlrev_b32 v21, 5, v28')
    a(f'v_lshl_add_u32 v21, v{vG}, 2, v21')
    a('v_add_u32 v22, 16, v21')
    a(f'v_and_b32 v8, 3, v{vROW}')
    a(f'v_lshl_add_u32 v9, v8, 3, v{vG}')
    a('v_mul_u32_u24 v9, 896, v9')
    a(f'v_add_u32 v9, v9, v{vC4}')
    a(f'v_add_u32 v9, {L1_WO}, v9')
    PA7 = 232
    for tp in range(7):
        a(f's_mul_i32 s{sT0}, s{sW}, 7')
        a(f's_add_u32 s{sT0}, s{sT0}, {tp}')
        a(f'v_xor_b32 v10, s{sT0}, v8')
        a(f'v_lshl_add_u32 v{PA7+tp}, v10, 5, v9')
    a(f'v_and_b32 v9, 7, v{vROW}')
    a('v_lshlrev_b32 v9, 18, v9')
    a(f'v_lshl_add_u32 v9, v{vC4}, 1, v9')
    a(f'v_lshrrev_b32 v10, 5, v{vLANE}')
    sexp(sT0, [(sW, 16384), (sU, 64)], WS_SP)
    a('v_lshl_add_u32 v23, v10, 13, v9')
    a(f'v_add_u32 v23, s{sT0}, v23')
    sexp(sT0, [(sX8, BLK), (sI, 8192), (sW, 2048)], WS_SP - 8 * 8192)
    a(f'v_add_u32 v25, s{sT0}, v{vL16}')
    sexp(sT0, [(sW, 64)], L1_FIN)
    a(f'v_add_u32 v19, s{sT0}, v{vL16}')
    a(f's_and_b32 s{sT2}, s{sI}, 8')
    sexp(sT0, [(sX8, BLK), (sT2, 128)], WS_XI1)
    a(f'v_and_b32 v18, 7, v{vLANE}')
    a(f'v_lshl_add_u32 v18, v18, 7, s{sT0}')
    a('s_waitcnt vmcnt(0)')
    def frags7(dst, base):
        for tp in range(7):
            TR(dst + 4 * tp, PA7 + tp, base)
            TR(dst + 4 * tp + 2, PA7 + tp, base + 4 * 896)
    def spread(dst, src):
        a(f'ds_bpermute_b32 v{dst}, v21, v{src}')
        a(f'ds_bpermute_b32 v{dst+1}, v21, v{src+1}')
        a(f'ds_bpermute_b32 v{dst+2}, v22, v{src}')
        a(f'ds_bpermute_b32 v{dst+3}, v22, v{src+1}')
    def out7(D5, vaddr):
        for t in range(4): a(f'v_bfi_b32 v{56+t}, s{sMASK}, v{vTAG}, v{D5+4*t}')
        a('s_mov_b32 exec_lo, 0')
        for t in range(3): a(f'v_bfi_b32 v{56+t}, s{sMASK}, v{vTAG}, v{D5+16+4*t}')
        a('s_mov_b32 exec_lo, -1')
        a(f'global_store_dwordx4 v{vaddr}, v[56:59], s[28:29] sc1')
    a(f's_cmp_lg_u32 s{sF}, 32')
    a('s_cbranch_scc1 L_nogu')
    for s in range(2):
        a(f'ds_read2_b64 v[{32+4*s}:{32+4*s+3}], v{vB1} offset0:{8*s} offset1:{8*s+4}')
    wait_prog(128, slp=2)
    stamp(13)
    for t in range(4):
        for s in range(2):
            TR(96 + 8 * t + 4 * s, 72 + t, (32 * s) * 256)
            TR(96 + 8 * t + 4 * s + 2, 72 + t, (32 * s + 16) * 256)
    a('s_waitcnt lgkmcnt(0)')
    for s in range(2):
        for t in range(4): MF(160 + 4 * t, 32 + 4 * s, 96 + 8 * t + 4 * s, None if s == 0 else 160 + 4 * t)
    for t in range(4): a(f'v_bfi_b32 v{56+t}, s{sMASK}, v{vTAG}, v{160+4*t}')
    setexec(0xffffffff)
    a('global_store_dwordx4 v76, v[56:59], s[28:29] sc1')
    setexec(-1)
    stamp(14)
    a.label('L_nogu')
    a('global_load_dwordx2 v[16:17], v18, s[28:29] sc1')
    UV = 96
    a(f's_add_u32 s{sT2}, s{sF}, 160')
    wait_prog(f's{sT2}', slp=1)
    stamp(5)
    for t in range(4):
        for q in range(4):
            TR(UV + 16 * t + 4 * q, 84 + t, (4 * q) * 512)
            TR(UV + 16 * t + 4 * q + 2, 84 + t, (4 * q + 2) * 512)
    WO = 192
    a(f's_add_u32 s{sT2}, s{sT2}, 28')
    if not o['wo2']:
        wait_prog(f's{sT2}')
        frags7(WO, 0)
    a('s_waitcnt vmcnt(0)')
    a(f'v_xor_b32 v16, s{sTAG32}, v16')
    a(f'v_xor_b32 v17, s{sLOC}, v17')
    a('v_or_b32 v16, v16, v17')
    a('v_cmp_ne_u32 vcc, 0, v16')
    a('s_cmp_eq_u64 vcc, 0')
    a(f's_cselect_b32 s{sLOC}, {o["local"]}, 0')
    stamp(15)
    sentinel_poll(79, 0xffff)
    a('s_waitcnt lgkmcnt(0)')
    stage(W_S3)
    wait_all(W_S3)
    stamp(6)
    def o_dma():
        for b in range(2):
            a(f's_add_u32 m0, s{sT3}, {b * 2048}')
            for i in range(2):
                a(f'global_load_lds_dwordx4 v{80+b}, s[28:29] offset:{i*1024} sc1')
    a(f's_cmp_lg_u32 s{sW}, 0')
    a('s_cbranch_scc1 L_h3r_f')
    L = loop_head2('L_h3')
    a('global_load_dwordx4 v[64:67], v82, s[28:29] sc1')
    o_dma()
    stage(W_H3)
    a('s_waitcnt vmcnt(4)')
    a(f'v_xor_b32 v66, s{sTAG32}, v66')
    a(f'v_xnor_b32 v67, s{sTAG32}, v67')
    a('v_or_b32 v67, v66, v67')
    a('v_mov_b32 v66, v64')
    a('v_cmp_ne_u32 vcc, 0, v67')
    a(f's_cbranch_vccnz {L}')
    allred_row([66], 'v_max_f32')
    allred_swap([66], [67], 'v_max_f32', 16)
    a('v_sub_f32 v64, v64, v66')
    a('v_exp_f32 v64, v64')
    a('v_mul_f32 v65, v64, v65')
    allred_row([65], 'v_add_f32')
    allred_swap([65], [67], 'v_add_f32', 16)
    a('v_rcp_f32 v65, v65')
    a('v_mul_f32 v64, v64, v65')
    a('v_cvt_pk_bf16_f32 v64, v64, v64')
    a('ds_write_b16 v83, v64')
    stage(W_WT)
    a('s_branch L_h3w')
    a.label('L_h3r')
    a(f's_sub_u32 s{sBUD}, s{sBUD}, 1')
    a('s_cbranch_scc1 L_end')
    o_dma()
    a('s_branch L_h3w')
    a.label('L_h3r_f')
    o_dma()
    stage(W_H3)
    a.label('L_h3w')
    OA = 32
    a('s_waitcnt vmcnt(0)')
    for b in range(2):
        for tl in range(2):
            TR(OA + 8 * b + 4 * tl, 92 + tl, b * 2048)
            TR(OA + 8 * b + 4 * tl + 2, 92 + tl, b * 2048 + 1024)
    a('s_waitcnt lgkmcnt(0)')
    for i in range(16): a(f'v_xor_b32 v{OA+i}, v{OA+i}, v20')
    a(f'v_or3_b32 v68, v{OA}, v{OA+1}, v{OA+2}')
    for i in range(3, 15, 2): a(f'v_or3_b32 v68, v68, v{OA+i}, v{OA+i+1}')
    a(f'v_or_b32 v68, v68, v{OA+15}')
    a('v_and_b32 v68, 0x00010001, v68')
    a('v_cmp_ne_u32 vcc, 0, v68')
    a('s_cbranch_vccnz L_h3r')
    stamp(7)
    wait_w0(W_WT, extra=['ds_read2_b64 v[60:63], v88 offset0:0 offset1:4'])
    a('s_waitcnt lgkmcnt(0)')
    for b in range(2):
        setexec(0x0f0f0f0f0f0f0f0f << (4 * b))
        a(f'v_mov_b64 v[{WB+4*b}:{WB+4*b+1}], v[60:61]')
        a(f'v_mov_b64 v[{WB+4*b+2}:{WB+4*b+3}], v[62:63]')
    setexec(-1)
    for b in range(2):
        for tl in range(2):
            MF(56 + 4 * tl, OA + 8 * b + 4 * tl, WB + 4 * b, None if b == 0 else 56 + 4 * tl)
    for i in range(4): a(f'v_cvt_pk_bf16_f32 v{64+i}, v{56+2*i}, v{56+2*i+1}')
    a('ds_write_b128 v89, v[64:67]')
    stage(W_OC)
    wait_all(W_OC, extra=[f'ds_read_b128 v[{32+4*q}:{32+4*q+3}], v90 offset:{q*1024}' for q in range(4)])
    stamp(8)
    D4 = 160
    for q in range(4):
        a(f's_waitcnt lgkmcnt({3 - q})')
        for t in range(4):
            MF(D4 + 4 * t, 32 + 4 * q, UV + 16 * t + 4 * q, None if q == 0 else D4 + 4 * t)
    for t in range(4): a(f'v_bfi_b32 v{56+t}, s{sMASK}, v{vTAG}, v{D4+4*t}')
    setexec(0xffffffff)
    store_flavoured(['global_store_dwordx4 v91, v[56:59], s[28:29]'], 'cx')
    setexec(-1)
    stamp(9)
    if o['wo2']:
        wait_prog(f's{sT2}')
        frags7(WO, 0)
    a('s_waitcnt vmcnt(0)')
    L = loop_head2('L_h4')
    for i in range(2):
        a(f'global_load_dwordx4 v[{32+4*i}:{32+4*i+3}], v15, s[28:29] offset:{1024*i} sc1')
    a('s_waitcnt vmcnt(0)')
    untag(range(32, 40), 48)
    a(f's_cbranch_vccnz {L}')
    stamp(17)
    stage(W_H4)
    for i in range(0, 4, 2): a(f'v_pk_add_f32 v[{32+i}:{33+i}], v[{32+i}:{33+i}], v[{36+i}:{37+i}]')
    allred_swap([32, 33, 34, 35], [36, 37, 38, 39], 'v_add_f32', 16)
    allred_swap([32, 33, 34, 35], [36, 37, 38, 39], 'v_add_f32', 32)
    a('v_cvt_pk_bf16_f32 v32, v32, v33')
    a('v_cvt_pk_bf16_f32 v33, v34, v35')
    spread(36, 32)
    a('s_waitcnt lgkmcnt(0)')
    for tp in range(7): MF(160 + 4 * tp, 36, WO + 4 * tp, None)
    out7(160, 23)
    stamp(18)
    a(f's_cmp_lt_u32 s{sU}, 64')
    a('s_cbranch_scc1 L_cdone')
    a('s_waitcnt vmcnt(0)')
    stamp(16)
    L = loop_head2('L_h5')
    for i in range(2):
        a(f'global_load_dwordx4 v[{32+4*i}:{32+4*i+3}], v25, s[28:29] offset:{1024*i} sc1')
    a('s_waitcnt vmcnt(0)')
    untag(range(32, 40), 48)
    a(f's_cbranch_vccnz {L}')
    stamp(19)
    for i in range(0, 4, 2): a(f'v_pk_add_f32 v[{32+i}:{33+i}], v[{32+i}:{33+i}], v[{36+i}:{37+i}]')
    allred_row([32, 33, 34, 35], 'v_add_f32', shifts=(4, 8))
    allred_swap([32, 33, 34, 35], [36, 37, 38, 39], 'v_add_f32', 16)
    allred_swap([32, 33, 34, 35], [36, 37, 38, 39], 'v_add_f32', 32)
    setexec(15)
    a('ds_write_b128 v19, v[32:35]')
    setexec(-1)
    stage(W_FIN)
    a.label('L_cdone')
    dump_stamps(20)
    a('s_endpgm')
    flush_tails()

    a.label('L_comp2')
    stamp(1)
    lane_consts()
    a(f's_and_b32 s{sKC}, s{sX8}, 3')
    a(f's_lshl_b32 s{sKC}, s{sKC}, 3')
    a(f's_lshr_b32 s{sT0}, s{sI}, 1')
    a(f's_add_u32 s{sKC}, s{sKC}, s{sT0}')
    a(f's_and_b32 s{sCH}, s{sI}, 1')
    a(f's_mov_b32 s{sSC}, {f32(LOG2E/16)}')
    a(f's_getreg_b32 s{sLOC}, hwreg(HW_REG_XCC_ID)')
    sexp(sT0, [(sX8, BLK), (sI, 8192), (sW, 2048)], WS_SX)
    a(f'v_add_u32 v57, s{sT0}, v{vL16}')
    a('v_xor_b32 v58, 0x2000, v57')
    a(f's_xor_b32 s{sT2}, s{sI}, 1')
    sexp(sT0, [(sX8, BLK), (sT2, 128)], WS_XID)
    a(f'v_mov_b32 v59, s{sT0}')
    a(f'v_lshlrev_b32 v61, 2, v{vL15}')
    a(f'v_add_u32 v61, {L2_MX}, v61')
    a('v_mov_b32 v9, 0xff800000')
    a('ds_write_b32 v61, v9')
    a('s_waitcnt lgkmcnt(0)')
    tags()
    a(f's_cmp_lg_u32 s{sW}, 0')
    a('s_cbranch_scc1 L_noxid')
    sentinel_addr(13, WS_XID)
    a(f'v_mov_b32 v{vT+1}, s{sLOC}')
    sentinel_put(13)
    a.label('L_noxid')
    tag8(sT2)
    for i in range(4):
        a(f's_lshr_b32 s{sT0}, s{sT2}, {2*i}')
        a(f's_and_b32 s{sT1}, s{sT0}, 2')
        a(f's_lshl_b32 s{sT1}, s{sT1}, 15')
        a(f's_and_b32 s{sT0}, s{sT0}, 1')
        a(f's_or_b32 s{sT0}, s{sT0}, s{sT1}')
        a(f'v_mov_b32 v{20+i}, s{sT0}')
    sexp(sT0, [(sB3, 1 << 20), (sCH, 1 << 15), (sW, 1 << 13), (sKC, 64)], WS_OW)
    a(f'v_lshlrev_b32 v28, 18, v{vG}')
    a(f'v_bfe_u32 v9, v{vLANE}, 2, 2')
    a('v_lshl_add_u32 v28, v9, 11, v28')
    a(f'v_lshl_add_u32 v28, v{vC4}, 1, v28')
    a(f'v_add_u32 v28, s{sT0}, v28')
    for r in range(1, 4): a(f'v_add_u32 v{28+r}, {r << 16}, v28')
    sexp(sT0, [(sX8, BLK), (sI, 256)], WS_ST)
    a(f'v_add_u32 v25, s{sT0}, v{vL16}')
    sentinel_addr(24, WS_SN3)
    a(f'v_and_b32 v8, 7, v{vLANE}')
    a('v_lshlrev_b32 v8, 1, v8')
    a(f's_lshl_b32 s{sT0}, s{sW}, 14')
    for s3 in range(4):
        a(f'v_add_u32 v9, {4*s3}, v{vG}')
        a('v_xor_b32 v9, v9, v8')
        a('v_lshlrev_b32 v9, 4, v9')
        a(f'v_lshl_add_u32 v9, v{vL15}, 10, v9')
        a(f'v_add_u32 v{40+s3}, {L2_QF}, v9')
        a(f'v_add_u32 v{44+s3}, s{sT0}, v9')
        a(f'v_add_u32 v{16+s3}, 0x10000, v{44+s3}')
    a(f's_and_b32 s{sT2}, s{sW}, 1')
    a(f's_lshr_b32 s{sT3}, s{sW}, 1')
    sexp(sT0, [(sT2, 4 * BLK), (sT3, 8192), (sB3, 4096), (sCH, 2048)], WS_QA)
    a(f'v_add_u32 v48, s{sT0}, v{vL16}')
    for i in range(1, 4): a(f'v_add_u32 v{48+i}, {BLK*i}, v48')
    a(f'v_lshrrev_b32 v8, 1, v{vLANE}')
    a(f'v_and_b32 v10, 1, v{vLANE}')
    for i in range(4):
        a(f's_lshl_b32 s{sT0}, s{sW}, 2')
        a(f's_add_u32 s{sT0}, s{sT0}, {i}')
        a(f's_and_b32 s{sT1}, s{sT0}, 7')
        a(f's_lshl_b32 s{sT1}, s{sT1}, 1')
        a(f'v_xor_b32 v9, s{sT1}, v8')
        a('v_lshlrev_b32 v9, 4, v9')
        a('v_lshl_add_u32 v9, v10, 3, v9')
        a(f's_lshl_b32 s{sT0}, s{sT0}, 10')
        a(f's_add_u32 s{sT0}, s{sT0}, {L2_QF}')
        a(f'v_add_u32 v{52+i}, s{sT0}, v9')
    a(f's_lshl_b32 s{sT0}, s{sW}, 2')
    a(f'v_lshrrev_b32 v8, 2, v{vL15}')
    a(f'v_add_u32 v8, s{sT0}, v8')
    a('v_and_b32 v9, 1, v8')
    a('v_lshlrev_b32 v9, 3, v9')
    a(f'v_and_b32 v10, 3, v{vL15}')
    a('v_add_u32 v9, v9, v10')
    a(f's_lshl_b32 s{sT0}, s{sCH}, 2')
    a(f'v_add_u32 v9, s{sT0}, v9')
    a('v_lshrrev_b32 v8, 1, v8')
    a('v_lshlrev_b32 v8, 18, v8')
    a('v_lshl_add_u32 v56, v9, 7, v8')
    a(f'v_add_u32 v56, {WS_SN2}, v56')
    a(f'v_lshlrev_b32 v0, 2, v{vLANE}')
    a(f'v_add_u32 v0, {L2_MW}, v0')
    a(f's_lshl_b32 s{sT0}, s{sW}, 8')
    a(f'v_add_u32 v60, s{sT0}, v0')
    a(f'v_add_u32 v63, {L2_P}, v{vL16}')
    a(f's_lshl_b32 s{sT0}, s{sW}, 10')
    a(f'v_add_u32 v62, s{sT0}, v63')
    a(f'v_mov_b32 v36, s{sTAG32}')
    a(f'v_not_b32 v37, s{sTAG32}')
    G = 64; CA = 96; CB = 160; QF = 224; SD = 32
    wait_prog(o['h2at'], slp=1)
    a('s_branch L_h2_first')
    a.label('L_h2')
    sentinel_poll(56, 0xffff)
    a.label('L_h2_first')
    stamp(5)
    for i in range(4):
        a(f'global_load_dwordx4 v[{G+8*i}:{G+8*i+3}], v{48+i}, s[28:29] sc1')
        a(f'global_load_dwordx4 v[{G+8*i+4}:{G+8*i+7}], v{48+i}, s[28:29] offset:1024 sc1')
    a('global_load_dwordx2 v[34:35], v59, s[28:29] sc1')
    assert o['h2at'] >= 64
    for s in range(16):
        a(f'ds_read_b128 v[{CA+4*s}:{CA+4*s+3}], v{44 + (s & 3)} offset:{(s >> 2) * 256}')
    wait_prog(128)
    for s in range(16):
        a(f'ds_read_b128 v[{CB+4*s}:{CB+4*s+3}], v{16 + (s & 3)} offset:{(s >> 2) * 256}')
    a('v_mov_b32 v32, 0')
    for k in range(8):
        a(f's_waitcnt vmcnt({8 - k})')
        a(f'ds_write_b64 v{52 + (k >> 1)}, v[{G+4*k}:{G+4*k+1}] offset:{512 * (k & 1)}')
        a(f'v_bitop3_b32 v32, v{G+4*k+2}, v36, v32 bitop3:0xbe')
        a(f'v_bitop3_b32 v32, v{G+4*k+3}, v37, v32 bitop3:0xbe')
    a('v_cmp_ne_u32 vcc, 0, v32')
    a('s_cbranch_vccnz L_h2')
    stage(A_QA)
    stamp(6)
    a(f'v_and_b32 v10, 7, v{vROW}')
    a(f'v_lshl_add_u32 v9, v{vROW}, 10, v{vC4}')
    a(f's_lshl_b32 s{sT0}, s{sW}, 8')
    a(f'v_add_u32 v9, s{sT0}, v9')
    def qreg(s): return (QF + 4 * s) if s < 8 else (G + 4 * (s - 8))
    def qrd(s): return f'ds_read_b128 v[{qreg(s)}:{qreg(s)+3}], v{40 + (s & 3)} offset:{(s >> 2) * 256}'
    wait_all(A_QA, extra=[qrd(s) for s in range(8)])
    stamp(7)
    for s in range(8, 16): a(qrd(s))
    def pareg(ct, ks):
        n = ct * 4 + ks
        st = n >> 1
        return (CA if n & 1 == 0 else CB) + 4 * st
    side = ['s_waitcnt vmcnt(0)', f'v_xor_b32 v34, s{sTAG32}, v34', f'v_xor_b32 v35, s{sLOC}, v35', 'v_or_b32 v34, v34, v35',
            'v_cmp_ne_u32 vcc, 0, v34', 's_cmp_eq_u64 vcc, 0', f's_cselect_b32 s{sLOC}, {o["local"]}, 0']
    for x in side: a(x)
    addr = []
    for t in range(8):
        addr += [f'v_xor_b32 v11, {t}, v10', f'v_lshl_add_u32 v{44+t}, v11, 5, v9']
    for t in range(4): addr += [f'v_add_u32 v{16+t}, 0x10000, v{44+t}']
    for t in range(4, 8): addr += [f'v_add_u32 v{48+t}, 0x10000, v{44+t}']
    def hi(ct): return 16 + ct if ct < 4 else 48 + ct
    trl = []
    for ct in range(8):
        for ks in range(4):
            trl += [trs(pareg(ct, ks), 44 + ct, ks * 16384), trs(pareg(ct, ks) + 2, hi(ct), ks * 16384)]
    for s in range(16):
        if s < 8: a(f's_waitcnt lgkmcnt({15 - s})')
        elif s == 8: a('s_waitcnt lgkmcnt(0)')
        MF(SD, CA + 4 * s, qreg(s), None if s == 0 else SD)
        if s < 8:
            for _ in range(2): a(addr.pop(0))
        else:
            for _ in range(2): a(trl.pop(0))
        MF(SD + 4, CB + 4 * s, qreg(s), None if s == 0 else SD + 4)
        if s < 8: a(addr.pop(0))
        else:
            for _ in range(2): a(trl.pop(0))
    assert not addr and len(trl) == 32
    for _ in range(6): a(trl.pop(0))
    for i in range(8): a(f'v_bfi_b32 v{G+i}, s{sMASK}, v{vTAG}, v{SD+i}')
    store_flavoured([f'global_store_dwordx4 v57, v[{G}:{G+3}], s[28:29]', f'global_store_dwordx4 v57, v[{G+4}:{G+7}], s[28:29] offset:1024'], 'sx')
    stamp(8)
    for x in trl: a(x)
    stamp(9)
    G2 = 72
    L = loop_head2('L_h25')
    a(f'global_load_dwordx4 v[{G2}:{G2+3}], v58, s[28:29] sc1')
    a(f'global_load_dwordx4 v[{G2+4}:{G2+7}], v58, s[28:29] offset:1024 sc1')
    a('s_waitcnt vmcnt(0)')
    untag(range(G2, G2 + 8), 16)
    a(f's_cbranch_vccnz {L}')
    stamp(10)
    for i in range(0, 8, 2): a(f'v_pk_add_f32 v[{SD+i}:{SD+i+1}], v[{SD+i}:{SD+i+1}], v[{G2+i}:{G2+i+1}]')
    a(f'v_max3_f32 v16, v{SD}, v{SD+1}, v{SD+2}')
    a(f'v_max3_f32 v17, v{SD+3}, v{SD+4}, v{SD+5}')
    a(f'v_max3_f32 v16, v16, v{SD+6}, v{SD+7}')
    a('v_max_f32 v16, v16, v17')
    a(f'v_mul_f32 v16, s{sSC}, v16')
    a('v_ceil_f32 v16, v16')
    a('ds_max_f32 v61, v16')
    a('ds_write_b32 v60, v16')
    for i in range(8): a(f'v_fma_f32 v{SD+i}, v{SD+i}, s{sSC}, -v16')
    for i in range(8): a(f'v_exp_f32 v{SD+i}, v{SD+i}')
    for i in range(4): a(f'v_cvt_pk_bf16_f32 v{G+i}, v{SD+2*i}, v{SD+2*i+1}')
    a(f'ds_write_b128 v62, v[{G}:{G+3}]')
    stage(A_P)
    PB = 72
    wait_all(A_P, extra=['ds_read_b32 v32, v61', 'ds_read2st64_b32 v[16:17], v0 offset0:0 offset1:1', 'ds_read2st64_b32 v[18:19], v0 offset0:2 offset1:3']
             + [f'ds_read_b128 v[{PB+4*ks}:{PB+4*ks+3}], v63 offset:{ks*1024}' for ks in range(4)])
    def resc(ks):
        return [f'v_sub_f32 v{16+ks}, v32, v{16+ks}', f'v_min_f32 v{16+ks}, 0x437f0000, v{16+ks}', f'v_cvt_u32_f32 v{16+ks}, v{16+ks}',
                f'v_mul_u32_u24 v{16+ks}, 0x800080, v{16+ks}'] + [f'v_pk_sub_u16 v{PB+4*ks+i}, v{PB+4*ks+i}, v{16+ks} clamp' for i in range(4)]
    a('s_waitcnt lgkmcnt(3)')
    for x in resc(0): a(x)
    OD = 224; OG = 40
    a(f's_mov_b32 s{sT3}, 0x00010001')
    pend = ['s_waitcnt lgkmcnt(0)'] + resc(1) + resc(2) + resc(3)
    for ct in range(8):
        MF(OD + 4 * ct, PB, pareg(ct, 0), None)
        for _ in range(4 if ct == 0 else 3): a(pend.pop(0))
    assert not pend
    def epi(tp):
        out = [f'v_cvt_pk_bf16_f32 v{OG+4*r+tp}, v{OD+8*tp+r}, v{OD+8*tp+4+r}' for r in range(4)]
        out += [f'v_bfi_b32 v{OG+4*r+tp}, s{sT3}, v{20+tp}, v{OG+4*r+tp}' for r in range(4)]
        return out
    for tp in range(4):
        k = 0
        for ks in range(1, 4):
            for c2 in range(2):
                ct = 2 * tp + c2
                MF(OD + 4 * ct, PB + 4 * ks, pareg(ct, ks), OD + 4 * ct)
                k += 1
                if k >= 4:
                    for _ in range(3):
                        if pend: a(pend.pop(0))
        assert not pend
        pend = epi(tp)
        if tp == o['sn3at']: sentinel_put(24, wave=1)
    a(f's_cmp_lg_u32 s{sW}, 0')
    a('s_cbranch_scc1 L_nol')
    for i in range(4): a(f'v_mov_b32 v{16+i}, 0x3f803f80')
    for ks in range(4): MF(64, 16, PB + 4 * ks, None if ks == 0 else 64)
    a.label('L_nol')
    for r in range(4):
        a(pend[r]); a(pend[4 + r])
        a(f'global_store_dwordx4 v{28+r}, v[{OG+4*r}:{OG+4*r+3}], s[28:29] sc1')
    a(f's_cmp_lg_u32 s{sW}, 0')
    a('s_cbranch_scc1 L_nost')
    a('v_mov_b32 v33, v64')
    a(f'v_mov_b32 v34, s{sTAG32}')
    a(f'v_not_b32 v35, s{sTAG32}')
    setexec(0xffff)
    a('global_store_dwordx4 v25, v[32:35], s[28:29] sc1')
    setexec(-1)
    a.label('L_nost')
    stage(A_O)
    stamp(11)
    a(f's_cmp_lt_u32 s{sU}, 56')
    a('s_cbranch_scc0 L_nodown')
    sexp(sT0, [(sX8, BLK), (sI, 4096)], WS_GU)
    a(f'v_add_u32 v80, s{sT0}, v{vL16}')
    a(f'v_bfe_u32 v9, v{vLANE}, 2, 1')
    a('v_lshlrev_b32 v21, 5, v9')
    a(f'v_lshl_add_u32 v21, v{vG}, 2, v21')
    a('v_add_u32 v22, 16, v21')
    a(f'v_and_b32 v8, 3, v{vROW}')
    a(f'v_lshl_add_u32 v9, v8, 3, v{vG}')
    a('v_mul_u32_u24 v9, 896, v9')
    a(f'v_add_u32 v9, v9, v{vC4}')
    for tp in range(7):
        a(f's_mul_i32 s{sT0}, s{sW}, 7')
        a(f's_add_u32 s{sT0}, s{sT0}, {tp}')
        a(f'v_xor_b32 v10, s{sT0}, v8')
        a(f'v_lshl_add_u32 v{PA7+tp}, v10, 5, v9')
    a(f'v_and_b32 v9, 7, v{vROW}')
    a('v_lshlrev_b32 v9, 18, v9')
    a(f'v_lshl_add_u32 v9, v{vC4}, 1, v9')
    a(f'v_lshrrev_b32 v10, 5, v{vLANE}')
    sexp(sT0, [(sW, 8192), (sU, 64)], WS_FP)
    a('v_lshl_add_u32 v24, v10, 12, v9')
    a(f'v_add_u32 v24, s{sT0}, v24')
    L = loop_head2('L_hf1', slp=4)
    GG = 64
    for i in range(4): a(f'v_mov_b32 v{GG+12+i}, v{vTAG}')
    for i in range(4):
        if i == 3: setexec(0xffffffff)
        a(f'global_load_dwordx4 v[{GG+4*i}:{GG+4*i+3}], v80, s[28:29] offset:{1024*i} sc1')
    setexec(-1)
    a('s_waitcnt vmcnt(0)')
    untag(range(GG, GG + 16), 48)
    a(f's_cbranch_vccnz {L}')
    stamp(2)
    for i in range(0, 4, 2):
        a(f'v_pk_add_f32 v[{GG+i}:{GG+i+1}], v[{GG+i}:{GG+i+1}], v[{GG+4+i}:{GG+5+i}]')
        a(f'v_pk_add_f32 v[{GG+8+i}:{GG+9+i}], v[{GG+8+i}:{GG+9+i}], v[{GG+12+i}:{GG+13+i}]')
    for i in range(0, 4, 2): a(f'v_pk_add_f32 v[{32+i}:{33+i}], v[{GG+i}:{GG+i+1}], v[{GG+8+i}:{GG+9+i}]')
    allred_swap([32, 33, 34, 35], [36, 37, 38, 39], 'v_add_f32', 32)
    for i in range(4): a(f'v_mov_b32 v{36+i}, v{32+i}')
    for i in range(4): a(f'v_permlane16_swap_b32 v{32+i}, v{36+i}')
    for i in range(8): bf16r(32 + i, 32 + i)
    k0 = 0.7978845608028654; k1 = 0.044715
    a(f's_mov_b32 s{sT0}, {f32(k1)}')
    for i in range(4): a(f'v_mul_f32 v{40+i}, v{32+i}, v{32+i}')
    for i in range(4): a(f'v_fma_f32 v{40+i}, v{40+i}, s{sT0}, 1.0')
    for i in range(4): a(f'v_mul_f32 v{40+i}, v{40+i}, v{32+i}')
    for i in range(4): a(f'v_mul_f32 v{40+i}, {f32(-2*k0*LOG2E)}, v{40+i}')
    for i in range(4): a(f'v_exp_f32 v{40+i}, v{40+i}')
    for i in range(4): a(f'v_add_f32 v{40+i}, 1.0, v{40+i}')
    for i in range(4): a(f'v_rcp_f32 v{40+i}, v{40+i}')
    for i in range(4): a(f'v_mul_f32 v{40+i}, v{40+i}, v{32+i}')
    for i in range(4): bf16r(40 + i, 40 + i)
    for i in range(4): a(f'v_mul_f32 v{40+i}, v{40+i}, v{36+i}')
    a('v_cvt_pk_bf16_f32 v32, v40, v41')
    a('v_cvt_pk_bf16_f32 v33, v42, v43')
    spread(36, 32)
    wait_prog(156)
    frags7(96, 0)
    a('s_waitcnt lgkmcnt(0)')
    for tp in range(7): MF(160 + 4 * tp, 36, 96 + 4 * tp, None)
    out7(160, 24)
    stamp(3)
    a.label('L_nodown')
    dump_stamps(12)
    a('s_endpgm')
    flush_tails()

    a.label('L_loader2b')
    for r in range(8):
        a(f'v_xor_b32 v8, {r << 5}, v{vL16}')
        a(f'v_add_u32 v{vA[r]}, {r * 2048}, v8')
    srd(6, 16777216)
    a(f's_lshl_b32 s{sOFF}, s{sX8}, 21')
    a(f's_lshr_b32 s{sT0}, s{sI}, 1')
    a(f's_lshl_b32 s{sT0}, s{sT0}, 18')
    a(f's_add_u32 s{sOFF}, s{sOFF}, s{sT0}')
    a(f's_and_b32 s{sT0}, s{sI}, 1')
    a(f's_lshl_b32 s{sT0}, s{sT0}, 10')
    a(f's_add_u32 s{sOFF}, s{sOFF}, s{sT0}')
    a(f's_mov_b32 m0, {L2_CKV}')
    nslow, nsig = o['nslow'], o['nsig']
    assert nslow % 8 == 0 and nsig % 8 == 0 and nslow <= nsig <= 128
    seq8 = [(vA[k], 16384 if k == 7 else 0) for k in range(8)]
    stamp(1)
    if nslow:
        a(f'v_mov_b32 v{vCNT}, {-tha}')
        run(seq8, nslow, tha)
        a(f'v_subrev_u32 v{vCNT}, {thb - tha}, v{vCNT}')
    else:
        a(f'v_mov_b32 v{vCNT}, {-thb}')
    stamp(2)
    if nsig > nslow: run(seq8, nsig - nslow, thb)
    a('s_waitcnt lgkmcnt(0)')
    tags()
    sentinel_addr(13, WS_SNC)
    sentinel_put(13)
    stamp(3)
    if nsig < 128: run(seq8, 128 - nsig, thb)
    stamp(4)
    drain(thb, 0, 4)
    stamp(5)
    a(f's_cmp_lt_u32 s{sU}, 56')
    a('s_cbranch_scc0 L_ld2_done')
    srd(22, 1605632)
    a(f's_lshr_b32 s{sT0}, s{sU}, 1')
    a(f's_and_b32 s{sT2}, s{sU}, 1')
    sexp(sOFF, [(sT0, 64 * 896), (sT2, 8 * 896)])
    a('s_mov_b32 m0, 0')
    wait_all(o['wdtrig'], slp=1)
    for k in range(4):
        a(f'v_xor_b32 v16, {k << 5}, v{vL16}')
        a('v_add_u32 v17, 4096, v16')
        for i in range(4): LD(16, 1024 * i)
        a('s_add_u32 m0, m0, 4096')
        for i in range(3): LD(17, 1024 * i)
        a('s_add_u32 m0, m0, 3072')
        a(f's_add_u32 s{sOFF}, s{sOFF}, {16*896}')
    prog(28, 0)
    a.label('L_ld2_done')
    stamp(6)
    dump_stamps(7)
    a('s_endpgm')

    a.label('L_loader1b')
    drain(th1, 0, 4)
    stamp(2)
    vD0, vD1 = 16, 17
    a(f'v_and_b32 v8, 15, v{vLANE}')
    a(f'v_lshlrev_b32 v9, 1, v{vG}')
    a('v_xor_b32 v8, v8, v9')
    a('v_lshlrev_b32 v8, 4, v8')
    a(f'v_mul_u32_u24 v9, 3584, v{vG}')
    a(f'v_add_u32 v{vD0}, v8, v9')
    a('v_xor_b32 v8, 128, v8')
    a(f'v_add_u32 v{vD1}, v8, v9')
    a('s_waitcnt lgkmcnt(0)')
    a(f's_add_u32 s{sTAG32}, s{sEP}, 1')
    sexp(sT0, [(sI, 128)], WS_SNC)
    a(f'v_and_b32 v37, 7, v{vLANE}')
    a(f'v_lshl_add_u32 v37, v37, 18, s{sT0}')
    wait_all(W_FREE, slp=1)
    sentinel_poll(37, 0xff)
    stamp(3)
    a(f'v_subrev_u32 v{vCNT}, {th2}, v{vCNT}')
    a(f's_xor_b32 s{sGI}, s{sU}, 64')
    a(f's_cmp_lt_u32 s{sGI}, 98')
    a('s_cbranch_scc0 L_ld_nogu')
    a(f's_mul_i32 s{sT0}, s{sGI}, 9363')
    a(f's_lshr_b32 s{sT0}, s{sT0}, 16')
    for q in range(98): assert (q * 9363) >> 16 == q // 7
    a(f's_mul_i32 s{sT2}, s{sT0}, 7')
    a(f's_sub_u32 s{sT2}, s{sGI}, s{sT2}')
    a(f's_mul_i32 s{sT2}, s{sT2}, {64*3584}')
    a(f's_lshl_b32 s{sT0}, s{sT0}, 8')
    a(f's_add_u32 s{sT2}, s{sT2}, s{sT0}')
    a(f's_mov_b32 m0, {L1_GU}')
    for base in (18, 20):
        a(f's_mov_b32 s{sOFF}, s{sT2}')
        srd(base, 1605632)
        run([(vD0, 4 * 3584), (vD1, 4 * 3584)] * 2, 16, th2)
    a('s_branch L_ld_fdone')
    a.label('L_ld_nogu')
    def unit896(nblk, step):
        for k in range(nblk):
            a(f'v_xor_b32 v{vD0}, {(k & 3) << 5}, v{vL16}')
            a(f'v_add_u32 v{vD1}, 4096, v{vD0}')
            for i in range(4): LD(vD0, 1024 * i)
            a('s_add_u32 m0, m0, 4096')
            for i in range(3): LD(vD1, 1024 * i)
            a('s_add_u32 m0, m0, 3072')
            st = step(k)
            a(f's_add_u32 s{sOFF}, s{sOFF}, {st}' if st >= 0 else f's_sub_u32 s{sOFF}, s{sOFF}, {-st}')
            prog(7, th2)
    a.label('L_ld_fdone')
    srd(12, 8388608)
    a(f's_mov_b32 s{sOFF}, s{sT3}')
    a(f's_mov_b32 m0, {L1_WUK}')
    a(f's_mov_b32 s{sT2}, 0')
    a.label('L_ld_uv')
    a(f'v_xor_b32 v{vD0}, s{sT2}, v{vA[0]}')
    run([(vD0, 16384)] * 8, 8, th2)
    a(f's_add_u32 s{sT2}, s{sT2}, 32')
    a(f's_cmp_lg_u32 s{sT2}, 256')
    a('s_cbranch_scc1 L_ld_uv')
    srd(14, 3670016)
    a(f's_bfe_u32 s{sT0}, s{sI}, 0x20001')
    a(f's_and_b32 s{sT2}, s{sI}, 1')
    sexp(sOFF, [(sH, 256 * 896), (sT0, 64 * 896), (sT2, 8 * 896)])
    a(f's_mov_b32 m0, {L1_WO}')
    if o['wo2']:
        drain(th2, 0, 4)
        stamp(5)
        wait_all(W_H3, slp=1)
        a(f'v_subrev_u32 v{vCNT}, {th2}, v{vCNT}')
    unit896(4, lambda k: 16 * 896)
    stamp(4)
    if o['wo2']: drain(th2, 0, th2)
    else: drain(th2, 0, 4)
    stamp(6)
    a(f's_cmp_lt_u32 s{sU}, 64')
    a('s_cbranch_scc1 L_fdone')
    a('s_setprio 0')
    lane_consts()
    tags()
    a(f's_bfe_u32 s{sT0}, s{sU}, 0x20004')
    a(f's_bfe_u32 s{sT2}, s{sU}, 0x10003')
    a(f's_bfe_u32 s{sT3}, s{sU}, 0x10002')
    sexp(sCNT, [(sT0, 224), (sT2, 128), (sT3, 896)])
    a(f's_and_b32 s{sT0}, s{sU}, 3')
    a(f's_lshl_b32 s{sT0}, s{sT0}, 3')
    a(f's_add_u32 s{sCNT}, s{sCNT}, s{sT0}')
    a(f'v_lshlrev_b32 v92, 2, v{vC4}')
    a(f'v_and_b32 v9, 3, v{vROW}')
    a('v_lshl_add_u32 v92, v9, 1, v92')
    a(f'v_add_u32 v92, s{sCNT}, v92')
    a('v_min_u32 v93, 1790, v92')
    a('global_load_ushort v94, v93, s[4:5]')
    sexp(sT0, [(sX8, BLK), (sI, 4096)], WS_FP - 8 * 4096)
    a(f'v_add_u32 v80, s{sT0}, v{vL16}')
    a(f'v_add_u32 v81, {L1_FIN + 256}, v{vL16}')
    a(f'v_lshlrev_b32 v82, 2, v{vL15}')
    a(f'v_add_u32 v82, {L1_FIN}, v82')
    a(f's_cmp_eq_u32 s{sT2}, 0')
    a(f's_cselect_b32 s{sT3}, -1, 0x7777')
    a(f's_and_b32 s{sT3}, s{sT3}, 0xffff')
    wait_w0(W_H4)
    stamp(11)
    L = loop_head2('L_hf2', slp=2)
    for i in range(4): a(f'v_mov_b32 v{44+i}, v{vTAG}')
    for i in range(4):
        if i == 3: setexec(0xffffffff)
        a(f'global_load_dwordx4 v[{32+4*i}:{32+4*i+3}], v80, s[28:29] offset:{1024*i} sc1')
    setexec(-1)
    a('s_waitcnt vmcnt(0)')
    untag(range(32, 48), 48)
    a(f's_cbranch_vccnz {L}')
    stamp(12)
    for i in range(0, 4, 2):
        a(f'v_pk_add_f32 v[{32+i}:{33+i}], v[{32+i}:{33+i}], v[{36+i}:{37+i}]')
        a(f'v_pk_add_f32 v[{40+i}:{41+i}], v[{40+i}:{41+i}], v[{44+i}:{45+i}]')
    for i in range(0, 4, 2): a(f'v_pk_add_f32 v[{32+i}:{33+i}], v[{32+i}:{33+i}], v[{40+i}:{41+i}]')
    allred_row([32, 33, 34, 35], 'v_add_f32', shifts=(4, 8))
    allred_swap([32, 33, 34, 35], [36, 37, 38, 39], 'v_add_f32', 16)
    allred_swap([32, 33, 34, 35], [36, 37, 38, 39], 'v_add_f32', 32)
    setexec(15)
    a('ds_write_b128 v81, v[32:35]')
    setexec(-1)
    a('ds_read_b32 v40, v82 offset:256')
    a('s_waitcnt lgkmcnt(0)')
    bf16r(40, 40)
    a(f'v_mul_f32 v41, {f32(-LOG2E)}, v40')
    a('v_exp_f32 v41, v41')
    a('v_add_f32 v41, 1.0, v41')
    a('v_rcp_f32 v41, v41')
    a('v_mul_f32 v40, v40, v41')
    bf16r(40, 40)
    a('v_lshlrev_b32 v94, 16, v94')
    stamp(13)
    wait_all(W_FIN, extra=[f'ds_read_b32 v{32+i}, v82 offset:{64*i}' for i in range(4)])
    a('s_waitcnt lgkmcnt(0)')
    a('v_add_f32 v32, v32, v33')
    a('v_add_f32 v34, v34, v35')
    a('v_add_f32 v32, v32, v34')
    bf16r(32, 32)
    a('v_mul_f32 v32, v32, v40')
    bf16r(32, 32)
    a('v_add_f32 v32, v32, v94')
    a('v_cvt_pk_bf16_f32 v32, v32, v32')
    a(f's_mov_b32 exec_lo, s{sT3}')
    a('s_mov_b32 exec_hi, 0')
    a('global_store_short v92, v32, s[24:25]')
    a(f's_cmp_lg_u32 s{sU}, 64')
    a('s_cbranch_scc1 L_fdone')
    a(f'v_mov_b32 v33, s{sTAG32}')
    a('v_mov_b32 v34, 0')
    setexec(1)
    a('global_store_dword v34, v33, s[28:29] sc1')
    a.label('L_fdone')
    stamp(10)
    dump_stamps(14)
    if o['probe'] >= 0:
        grp, wv, idx = o['pg'], o['pw'], o['probe']
        a(f's_cmp_lg_u32 s{sU}, 64')
        a('s_cbranch_scc1 L_end')
        setexec(-1)
        a.label('L_pr0')
        a('s_memrealtime s[96:97]')
        a('s_waitcnt lgkmcnt(0)')
        a(f's_sub_u32 s96, s96, s{sTS}')
        a('s_cmp_lt_u32 s96, 2500')
        a('s_cbranch_scc1 L_pr0')
        a(f'v_mul_u32_u24 v9, 768, v{vLANE}')
        a(f'v_add_u32 v9, {WS_TS}, v9')
        for k in range(4):
            a(f'v_add_u32 v10, {k * 64 * 768}, v9')
            a(f'global_load_dword v{32+k}, v10, s[28:29] sc1')
        waves = [0] if wv == 0 else [1, 2, 3, 4]
        n = 0
        for k in range(2):
            if grp == 2 and k == 0: continue
            for w in waves:
                a(f'v_add_u32 v10, {((2 * min(grp, 1) + k) * 64) * 768 + w * 128 + idx * 4}, v9')
                a(f'global_load_dword v{40+n}, v10, s[28:29] sc1'); n += 1
        a('s_waitcnt vmcnt(0)')
        for k in range(4): a(f'v_subrev_u32 v{32+k}, s{sTS}, v{32+k}')
        for k in range(n): a(f'v_subrev_u32 v{40+k}, s{sTS}, v{40+k}')
        for k in range(1, 4): a(f'v_min_i32 v32, v32, v{32+k}')
        op = 'v_min_i32' if o['pmin'] else 'v_max_i32'
        for k in range(1, n): a(f'{op} v40, v40, v{40+k}')
        allred_row([32], 'v_min_i32'); allred_swap([32], [33], 'v_min_i32', 16); allred_swap([32], [33], 'v_min_i32', 32)
        allred_row([40], op); allred_swap([40], [41], op, 16); allred_swap([40], [41], op, 32)
        a('v_readfirstlane_b32 s94, v32')
        a('v_readfirstlane_b32 s95, v40')
        a('s_sub_u32 s95, s95, s94')
        a('s_min_u32 s95, s95, 3000')
        a('s_lshl_b32 s95, s95, 3')
        a('s_add_u32 s95, s95, s94')
        a('s_add_u32 s95, s95, 4000')
        a.label('L_pr1')
        a('s_memrealtime s[96:97]')
        a('s_waitcnt lgkmcnt(0)')
        a(f's_sub_u32 s96, s96, s{sTS}')
        a('s_cmp_lt_i32 s96, s95')
        a('s_cbranch_scc1 L_pr1')
    a('s_endpgm')
    flush_tails()

    a.label('L_end')
    a('s_endpgm')
    a.label('L_codeend')
    a.hazard_pass()
    hdr = open('recurrent_scan__compressed_kv_cla__geglu_ffn__decode.s.ref').read().split('; Override')[0]
    return hdr + f"""; @launch grid=(256,1,1) block=({64*NW},1,1) lds={LDS_BYTES}
.amdgcn_target "amdgcn-amd-amdhsa--gfx950"
.text
.globl {KN}
.p2align 12
.p2align 8
.type {KN},@function
{KN}:
{a.text()}.section .rodata,"a"
.p2align 6
.amdhsa_kernel {KN}
  .amdhsa_next_free_vgpr 256
  .amdhsa_next_free_sgpr 102
  .amdhsa_accum_offset 256
  .amdhsa_group_segment_fixed_size 0
  .amdhsa_kernarg_size 104
  .amdhsa_user_sgpr_count 2
  .amdhsa_user_sgpr_kernarg_segment_ptr 1
  .amdhsa_system_sgpr_workgroup_id_x 1
.end_amdhsa_kernel
"""

if __name__ == '__main__':
    out = sys.argv[1]
    kw = {}
    for t in sys.argv[2:]:
        k, v = t.split('=')
        kw[k] = int(v)
    open(out, 'w').write(gen(**kw))
```
